```python
import torch

def _softmax(x, axis=-1):
    return torch.softmax(x, dim=axis)
def _gelu(x):
    return torch.nn.functional.gelu(x, approximate="tanh")
def _silu(x):
    return torch.nn.functional.silu(x)
def _sigmoid(x):
    return torch.sigmoid(x)
def _layernorm(x, axis=-1, eps=1e-5):
    m = x.mean(dim=axis, keepdim=True)
    v = x.var(dim=axis, keepdim=True, unbiased=False)
    return (x - m) / torch.sqrt(v + eps)
def _scatter_add(tgt, idx, src, axis=0):
    return tgt.clone().index_add_(axis, idx, src)
def _segment_sum(src, seg, n):
    out = torch.zeros((n,) + src.shape[1:], dtype=src.dtype)
    return out.index_add_(0, seg, src)
def _pad(x, pw):
    flat = tuple(v for pair in reversed(pw) for v in pair)
    return torch.nn.functional.pad(x, flat)

kernel_name = 'gated_mix__compressed_kv_cla__geglu_ffn__decode'

def setup_inputs():

    _w = (lambda a: (lambda t: t.to(torch.bfloat16) if t.is_floating_point() else t)(torch.as_tensor(a)))
    def _A_setup():
        B, H, Sq, Sk, D, M = 2, 32, 1, 8192, 128, 512
        Dc = 4 * D
        return {
            "x": _w((lambda *s: torch.randn(*s, dtype=torch.bfloat16) * 0.05)(B, Sq, M)),
            "c_kv": _w((lambda *s: torch.randn(*s, dtype=torch.bfloat16) * 1.6)(B, Sk, Dc)),
            "w_q": _w((lambda *s: torch.randn(*s, dtype=torch.bfloat16) * 6.4)(M, H, D) * (M ** -0.5)),
            "w_uk": _w((lambda *s: torch.randn(*s, dtype=torch.bfloat16) * 6.4)(Dc, H, D) * (Dc ** -0.5)),
            "w_uv": _w((lambda *s: torch.randn(*s, dtype=torch.bfloat16) * 1.6)(Dc, H, D) * (Dc ** -0.5)),
            "w_o": _w((lambda *s: torch.randn(*s, dtype=torch.bfloat16) * 1.6)(H, D, M) * ((H * D) ** -0.5)),
        }
    _A_in = _A_setup()

    def _B_setup():
        B, S, D, F = 2, 1, 512, 1792
        return {
            "x": _w((lambda *s: torch.randn(*s, dtype=torch.bfloat16) * 0.05)(B, S, D)),
            "w_gate": _w((lambda *s: torch.randn(*s, dtype=torch.bfloat16) * 0.4)(D, F)),
            "w_up": _w((lambda *s: torch.randn(*s, dtype=torch.bfloat16) * 0.4)(D, F)),
            "w_down": _w((lambda *s: torch.randn(*s, dtype=torch.bfloat16) * 0.4)(F, D)),
        }
    _B_in = _B_setup()

    return {
        "A_x": _A_in["x"],
        "A_c_kv": _A_in["c_kv"],
        "A_w_q": _A_in["w_q"],
        "A_w_uk": _A_in["w_uk"],
        "A_w_uv": _A_in["w_uv"],
        "A_w_o": _A_in["w_o"],
        "B_x": _B_in["x"],
        "B_w_gate": _B_in["w_gate"],
        "B_w_up": _B_in["w_up"],
        "B_w_down": _B_in["w_down"],
        "gate_w": _w((lambda *s: torch.randn(*s, dtype=torch.bfloat16) * 0.1)(512) * 16.0),
    }

def reference(A_x, A_c_kv, A_w_q, A_w_uk, A_w_uv, A_w_o, B_x, B_w_gate, B_w_up, B_w_down, gate_w):
    def _A_ref(x, c_kv, w_q, w_uk, w_uv, w_o):
        B, Sq, M = x.shape[0], x.shape[1], x.shape[2]
        Sk = c_kv.shape[1]
        H, D = w_q.shape[1], w_q.shape[2]
        q = torch.einsum("bqm,mhd->bhqd", x, w_q)
        k = torch.einsum("bkc,chd->bhkd", c_kv, w_uk)
        v = torch.einsum("bkc,chd->bhkd", c_kv, w_uv)
        scores = torch.einsum("bhqd,bhkd->bhqk", q, k) * (D ** -0.5)
        off = Sk - Sq
        qi = torch.arange(Sq)[:, None]
        kj = torch.arange(Sk)[None, :]
        cmask = kj <= (qi + off)
        scores = torch.where(cmask[None, None], scores, -1e9)
        p = _softmax(scores, axis=-1)
        ctx = torch.einsum("bhqk,bhkd->bhqd", p, v)
        return torch.einsum("bhqd,hdm->bqm", ctx, w_o)

    def _B_ref(x, w_gate, w_up, w_down):
        return (_gelu(x @ w_gate) * (x @ w_up)) @ w_down

    x = A_x
    g = _sigmoid((x * gate_w).sum(-1, keepdims=True))
    a = _A_ref(x, A_c_kv, A_w_q, A_w_uk, A_w_uv, A_w_o)
    b = _B_ref(x, B_w_gate, B_w_up, B_w_down)
    return g * a + (1 - g) * b
```

```python
import sys

KNAME = "gated_mix__compressed_kv_cla__geglu_ffn__decode_kernel"

QC_OFF   = 0
STAT_OFF = 0x10000
OUTP_OFF = 0x20000
PART_OFF = 0x120000
LDS_BYTES = 163840
MAXIT = 200000

class G:
    N = [0]
    def __init__(self):
        self.L = []
        self.vm = []
    def e(self, s):
        self.L.append("  " + s)
    def c(self, s):
        self.L.append("  ; " + s)
    def lab(self, s):
        self.L.append(s + ":")
    def nl(self, p="L"):
        G.N[0] += 1
        return f"{p}_{G.N[0]}"
    def vi(self, tag):
        self.vm.append(tag)
        assert len(self.vm) <= 63, "too many outstanding vmem"
    def vw(self, tag):
        idx = max(i for i, t in enumerate(self.vm) if t == tag)
        n = len(self.vm) - 1 - idx
        self.e(f"s_waitcnt vmcnt({n})")
        self.vm = self.vm[idx + 1:]
    def vw0(self):
        self.e("s_waitcnt vmcnt(0)")
        self.vm = []
    def nop(self, n):
        self.e(f"s_nop {n-1}")

def vr(a, n):
    return f"v[{a}:{a+n-1}]" if n > 1 else f"v{a}"

S_X, S_CKV, S_WQ, S_WUK, S_WUV, S_WO, S_BX, S_WG, S_WU, S_WD, S_GW, S_OUT, S_DBG, S_WS = [4 + 2*i for i in range(14)]
def sp(a): return f"s[{a}:{a+1}]"
S_WAVE = 33
S_H = 34
S_J = 35
S_SELLO = 36
S_SELHI = 37
S_CNT = 38
S_T0 = 40
S_EX = 48
S_B = 50
S_S = 51
S_IDX = 52

def prologue(g, nwg, endlab):
    g.e(f"s_cmp_ge_u32 s2, {nwg}")
    g.e(f"s_cbranch_scc1 {endlab}")
    g.e("s_load_dwordx16 s[4:19], s[0:1], 0")
    g.e("s_load_dwordx8 s[20:27], s[0:1], 64")
    g.e("s_load_dwordx4 s[28:31], s[0:1], 96")
    g.e("v_and_b32 v1, 63, v0")
    g.e("v_lshrrev_b32 v2, 6, v0")
    g.e("s_nop 0")
    g.e(f"v_readfirstlane_b32 s{S_WAVE}, v2")
    g.e(f"s_mov_b32 s{S_SELLO}, 0x05040100")
    g.e(f"s_mov_b32 s{S_SELHI}, 0x07060302")
    g.e("s_waitcnt lgkmcnt(0)")

def fill(g):
    g.c("sentinel fill")
    for i in range(4):
        g.e(f"v_mov_b32 v{4+i}, -1")
    g.e("v_lshlrev_b32 v8, 4, v0")
    g.e(f"s_lshl_b32 s{S_T0}, s2, 14")
    g.e(f"s_add_u32 s{S_T0}, s{S_T0}, {PART_OFF}")
    g.e(f"v_add_u32 v9, s{S_T0}, v8")
    for i in range(4):
        g.e(f"global_store_dwordx4 v9, v[4:7], {sp(S_WS)} sc1"); g.vi("fill")
        if i < 3: g.e("v_add_u32 v9, 0x1000, v9")
    g.e(f"s_lshl_b32 s{S_T0}, s2, 12")
    g.e(f"s_add_u32 s{S_T0}, s{S_T0}, {OUTP_OFF}")
    g.e(f"v_add_u32 v9, s{S_T0}, v8")
    g.e(f"global_store_dwordx4 v9, v[4:7], {sp(S_WS)} sc1"); g.vi("fill")
    g.e(f"s_lshl_b32 s{S_T0}, s2, 9")
    g.e(f"v_add_u32 v9, s{S_T0}, v8")
    g.e("v_cmp_gt_u32 vcc, 32, v0")
    g.e(f"s_and_saveexec_b64 {sp(S_EX)}, vcc")
    lab = g.nl("Lf")
    g.e(f"s_cbranch_execz {lab}")
    g.e(f"global_store_dwordx4 v9, v[4:7], {sp(S_WS)} sc1")
    g.lab(lab)
    g.e(f"s_mov_b64 exec, {sp(S_EX)}")
    g.vi("fill")

def fill_signal(g):
    g.c("fill signal")
    g.vw("fill")
    g.e("s_barrier")
    lab = g.nl("Lfs")
    g.e(f"s_cmp_lg_u32 s{S_WAVE}, 0")
    g.e(f"s_cbranch_scc1 {lab}")
    g.e("v_cmp_eq_u32 vcc, 0, v0")
    g.e(f"s_and_saveexec_b64 {sp(S_EX)}, vcc")
    g.e(f"s_and_b32 s{S_T0}, s2, 15")
    g.e(f"s_lshl_b32 s{S_T0}, s{S_T0}, 2")
    g.e(f"v_mov_b32 v4, s{S_T0}")
    g.e("v_mov_b32 v5, 1")
    g.e(f"global_atomic_add v4, v5, {sp(S_DBG)} sc1")
    g.e(f"s_mov_b64 exec, {sp(S_EX)}")
    g.lab(lab)
    g.vi("atom")

def fill_wait(g, vt=4):
    g.c("fill wait")
    L = g.nl("Lfw"); D = g.nl("Lfwd")
    g.e(f"s_mov_b32 s{S_CNT}, {MAXIT}")
    g.e(f"v_and_b32 v{vt}, 15, v1")
    g.e(f"v_lshlrev_b32 v{vt}, 2, v{vt}")
    g.lab(L)
    g.e(f"global_load_dword v{vt+1}, v{vt}, {sp(S_DBG)} sc1")
    g.vw0()
    g.e(f"v_cmp_ne_u32 vcc, 16, v{vt+1}")
    g.e(f"s_cbranch_vccz {D}")
    g.e(f"s_sub_u32 s{S_CNT}, s{S_CNT}, 1")
    g.e(f"s_cmp_eq_u32 s{S_CNT}, 0")
    g.e(f"s_cbranch_scc1 {D}")
    g.e("s_sleep 2")
    g.e(f"s_branch {L}")
    g.lab(D)

def poll(g, issue, regs, vt):
    L = g.nl("Lp"); D = g.nl("Lpd")
    g.e(f"s_mov_b32 s{S_CNT}, {MAXIT}")
    g.lab(L)
    issue()
    g.vw0()
    rs = list(regs)
    g.e(f"v_max_u32 v{vt}, v{rs[0]}, v{rs[1]}")
    rs = rs[2:]
    while len(rs) >= 2:
        g.e(f"v_max3_u32 v{vt}, v{vt}, v{rs[0]}, v{rs[1]}"); rs = rs[2:]
    if rs:
        g.e(f"v_max_u32 v{vt}, v{vt}, v{rs[0]}")
    g.e(f"v_cmp_eq_u32 vcc, -1, v{vt}")
    g.e(f"s_cbranch_vccz {D}")
    g.e(f"s_sub_u32 s{S_CNT}, s{S_CNT}, 1")
    g.e(f"s_cmp_eq_u32 s{S_CNT}, 0")
    g.e(f"s_cbranch_scc1 {D}")
    g.e("s_sleep 1")
    g.e(f"s_branch {L}")
    g.lab(D)

def canon(g, r):
    g.e(f"v_min_u32 v{r}, -2, v{r}")

def dot_pairs(g, A, B, xp0, xp1, acc, t0=4, t1=5):
    for i in range(4):
        g.e(f"v_perm_b32 v{t0}, v{B+i}, v{A+i}, s{S_SELLO}")
        g.e(f"v_perm_b32 v{t1}, v{B+i}, v{A+i}, s{S_SELHI}")
        g.e(f"v_dot2c_f32_bf16 v{acc+2*i}, v{t0}, v{xp0}")
        g.e(f"v_dot2c_f32_bf16 v{acc+2*i+1}, v{t1}, v{xp0}")
        g.e(f"v_dot2c_f32_bf16 v{acc+8+2*i}, v{t0}, v{xp1}")
        g.e(f"v_dot2c_f32_bf16 v{acc+8+2*i+1}, v{t1}, v{xp1}")

def prepair(g, A, B, t0=4):
    for i in range(4):
        g.e(f"v_perm_b32 v{t0}, v{B+i}, v{A+i}, s{S_SELLO}")
        g.e(f"v_perm_b32 v{B+i}, v{B+i}, v{A+i}, s{S_SELHI}")
        g.e(f"v_mov_b32 v{A+i}, v{t0}")

def dot_prepaired(g, A, B, xp0, xp1, acc):
    for i in range(4):
        g.e(f"v_dot2c_f32_bf16 v{acc+2*i}, v{A+i}, v{xp0}")
        g.e(f"v_dot2c_f32_bf16 v{acc+2*i+1}, v{B+i}, v{xp0}")
        g.e(f"v_dot2c_f32_bf16 v{acc+8+2*i}, v{A+i}, v{xp1}")
        g.e(f"v_dot2c_f32_bf16 v{acc+8+2*i+1}, v{B+i}, v{xp1}")

def zero(g, base, n):
    for i in range(n):
        g.e(f"v_mov_b32 v{base+i}, 0")

B_RED = 0
B_QBF = 0x8000
B_CTXC = 0x8200
B_CTXP = 0x8400
B_HBF = 0x8600
V_ACC = 16
V_XP = 32
V_WQ = 64
V_UK = 192
V_UV = 224

def roleB_ids(g):
    g.e(f"s_and_b32 s{S_H}, s{S_IDX}, 31")
    g.e(f"s_lshr_b32 s{S_J}, s{S_IDX}, 5")
    g.e("v_lshrrev_b32 v2, 4, v1")
    g.e("v_and_b32 v3, 15, v1")

def B1_loads(g, with_uv=True):
    g.c("B1 loads: x pairs, w_q, w_uk, w_uv")
    g.e(f"s_lshl_b32 s{S_T0}, s{S_WAVE}, 8")
    g.e("v_lshlrev_b32 v10, 6, v2")
    g.e(f"v_add_u32 v10, s{S_T0}, v10")
    for b in range(2):
        for q in range(4):
            g.e(f"global_load_dwordx4 {vr(V_XP+16*b+4*q,4)}, v10, {sp(S_X)} offset:{b*1024+q*16}"); g.vi("x")
    g.e(f"s_lshl_b32 s{S_T0}, s{S_WAVE}, 20")
    g.e(f"s_lshl_b32 s{S_T0+1}, s{S_H}, 8")
    g.e(f"s_add_u32 s{S_T0}, s{S_T0}, s{S_T0+1}")
    g.e("v_lshlrev_b32 v10, 18, v2")
    g.e("v_lshlrev_b32 v11, 4, v3")
    g.e("v_add_u32 v10, v10, v11")
    g.e(f"v_add_u32 v10, s{S_T0}, v10")
    for i in range(32):
        g.e(f"global_load_dwordx4 {vr(V_WQ+4*i,4)}, v10, {sp(S_WQ)}"); g.vi(f"wq{i}")
        if i < 31: g.e("v_add_u32 v10, 0x2000, v10")
    g.e(f"s_lshl_b32 s{S_T0}, s{S_J}, 20")
    g.e(f"s_lshl_b32 s{S_T0+2}, s{S_WAVE}, 18")
    g.e(f"s_add_u32 s{S_T0}, s{S_T0}, s{S_T0+2}")
    g.e(f"s_add_u32 s{S_T0}, s{S_T0}, s{S_T0+1}")
    g.e("v_lshlrev_b32 v10, 13, v3")
    g.e("v_lshlrev_b32 v11, 4, v2")
    g.e("v_add_u32 v10, v10, v11")
    g.e(f"v_add_u32 v10, s{S_T0}, v10")
    for tl in range(2):
        for ks in range(4):
            g.e(f"global_load_dwordx4 {vr(V_UK+16*tl+4*ks,4)}, v10, {sp(S_WUK)} offset:{ks*64}"); g.vi("uk")
        if tl == 0: g.e("v_add_u32 v10, 0x20000, v10")
    if with_uv:
        uv_loads(g)

def uv_loads(g):
    g.e(f"s_lshl_b32 s{S_T0}, s{S_J}, 20")
    g.e(f"s_lshl_b32 s{S_T0+2}, s{S_WAVE}, 18")
    g.e(f"s_add_u32 s{S_T0}, s{S_T0}, s{S_T0+2}")
    g.e(f"s_lshl_b32 s{S_T0+1}, s{S_H}, 8")
    g.e(f"s_add_u32 s{S_T0}, s{S_T0}, s{S_T0+1}")
    g.e("v_lshlrev_b32 v10, 16, v2")
    g.e("v_lshlrev_b32 v11, 4, v3")
    g.e("v_add_u32 v10, v10, v11")
    g.e(f"v_add_u32 v10, s{S_T0}, v10")
    for i in range(8):
        g.e(f"global_load_dwordx4 {vr(V_UV+4*i,4)}, v10, {sp(S_WUV)}"); g.vi("uv")
        if i < 7: g.e("v_add_u32 v10, 0x2000, v10")

def red16_to_bf16(g, dst):
    g.e("s_waitcnt lgkmcnt(0)")
    g.e("s_barrier")
    g.e("v_lshlrev_b32 v10, 2, v0")
    for p in range(16):
        g.e(f"ds_read_b32 v{64+p}, v10 offset:{B_RED+p*1024}") if False else None
    return

def red_write16(g):
    g.e(f"s_lshl_b32 s{S_T0}, s{S_WAVE}, 12")
    g.e("v_lshlrev_b32 v10, 10, v2")
    g.e("v_lshlrev_b32 v11, 5, v3")
    g.e("v_add_u32 v10, v10, v11")
    g.e(f"v_add_u32 v10, s{S_T0}, v10")
    g.nop(1)
    for b in range(2):
        for q in range(2):
            g.e(f"ds_write_b128 v10, {vr(V_ACC+8*b+4*q,4)} offset:{B_RED+b*512+q*16}")

def red_sum(g, npart, stride, dst, tmp):
    g.e("s_waitcnt lgkmcnt(0)")
    g.e("s_barrier")
    g.e("v_lshlrev_b32 v10, 2, v0")
    for p in range(npart):
        g.e(f"ds_read_b32 v{tmp+p}, v10 offset:{B_RED+p*stride}")
    g.e("s_waitcnt lgkmcnt(0)")
    n = npart
    while n > 1:
        for p in range(n // 2):
            g.e(f"v_add_f32 v{tmp+p}, v{tmp+p}, v{tmp+p+n//2}")
        n //= 2
    g.e(f"v_cvt_pk_bf16_f32 v{tmp}, v{tmp}, v{tmp}")
    g.e("v_lshlrev_b32 v10, 1, v0")
    g.e(f"ds_write_b16 v10, v{tmp} offset:{dst}")
    g.e("s_waitcnt lgkmcnt(0)")
    g.e("s_barrier")

def B1_compute(g):
    g.c("S1: q = x @ wq[:,h,:]")
    zero(g, V_ACC, 16)
    for t in range(16):
        g.vw(f"wq{2*t+1}")
        dot_pairs(g, V_WQ+8*t, V_WQ+8*t+4, V_XP+t, V_XP+16+t, V_ACC)
    g.nop(3)
    red_write16(g)
    red_sum(g, 16, 1024, B_QBF, V_XP)
    g.c("S2: qc = q @ wuk^T")
    g.e("v_and_b32 v10, 1, v1")
    g.e("v_lshlrev_b32 v10, 8, v10")
    g.e("v_lshlrev_b32 v11, 4, v2")
    g.e("v_add_u32 v10, v10, v11")
    for ks in range(4):
        g.e(f"ds_read_b128 {vr(V_XP+4*ks,4)}, v10 offset:{B_QBF+ks*64}")
    zero(g, V_ACC, 8)
    g.vw("uk")
    g.e("s_waitcnt lgkmcnt(0)")
    for ks in range(4):
        for tl in range(2):
            g.e(f"v_mfma_f32_16x16x32_bf16 {vr(V_ACC+4*tl,4)}, {vr(V_UK+16*tl+4*ks,4)}, {vr(V_XP+4*ks,4)}, {vr(V_ACC+4*tl,4)}")

def B1_store(g):
    g.e(f"s_lshl_b32 s{S_T0}, s{S_H}, 10")
    g.e(f"s_lshl_b32 s{S_T0+1}, s{S_J}, 8")
    g.e(f"s_add_u32 s{S_T0}, s{S_T0}, s{S_T0+1}")
    g.e(f"s_lshl_b32 s{S_T0+1}, s{S_WAVE}, 6")
    g.e(f"s_add_u32 s{S_T0}, s{S_T0}, s{S_T0+1}")
    g.e("v_lshlrev_b32 v10, 15, v3")
    g.e("v_lshlrev_b32 v11, 3, v2")
    g.e("v_add_u32 v10, v10, v11")
    g.e(f"v_add_u32 v10, s{S_T0}, v10")
    g.nop(8)
    for tl in range(2):
        g.e(f"v_cvt_pk_bf16_f32 v{4+2*tl}, v{V_ACC+4*tl}, v{V_ACC+4*tl+1}")
        g.e(f"v_cvt_pk_bf16_f32 v{5+2*tl}, v{V_ACC+4*tl+2}, v{V_ACC+4*tl+3}")
    for r in range(4, 8): canon(g, r)
    g.e("v_cmp_gt_u32 vcc, 2, v3")
    g.e(f"s_and_saveexec_b64 {sp(S_EX)}, vcc")
    for tl in range(2):
        g.e(f"global_store_dwordx2 v10, {vr(4+2*tl,2)}, {sp(S_WS)} offset:{QC_OFF+tl*32} sc1"); g.vi("st")
    g.e(f"s_mov_b64 exec, {sp(S_EX)}")

V_WO = 64
V_FG = 192
V_FU = 208
V_FD = 32
V_FX = 48

def B2_loads(g, with_uv=False):
    g.c("B2 loads: ffn weights, w_o")
    if with_uv:
        uv_loads(g)
    skip = g.nl("Lnoffn")
    g.e(f"s_cmp_ge_u32 s{S_IDX}, 112")
    g.e(f"s_cbranch_scc1 {skip}")
    g.e("v_lshrrev_b32 v12, 1, v1")
    g.e("v_and_b32 v13, 1, v1")
    g.e(f"s_lshl_b32 s{S_T0}, s{S_WAVE}, 8")
    g.e("v_lshlrev_b32 v10, 3, v12")
    g.e(f"v_add_u32 v10, s{S_T0}, v10")
    for b in range(2):
        g.e(f"global_load_dwordx2 {vr(V_FX+2*b,2)}, v10, {sp(S_X)} offset:{b*1024}"); g.vi("fx")
    g.e(f"s_mul_i32 s{S_T0}, s{S_WAVE}, {128*3584}")
    g.e(f"s_lshl_b32 s{S_T0+1}, s{S_IDX}, 5")
    g.e(f"s_add_u32 s{S_T0}, s{S_T0}, s{S_T0+1}")
    g.e(f"s_mov_b32 s{S_T0+1}, {4*3584}")
    g.e(f"v_mul_lo_u32 v10, v12, s{S_T0+1}")
    g.e("v_lshlrev_b32 v11, 4, v13")
    g.e("v_add_u32 v10, v10, v11")
    g.e(f"v_add_u32 v10, s{S_T0}, v10")
    for r in range(4):
        g.e(f"global_load_dwordx4 {vr(V_FG+4*r,4)}, v10, {sp(S_WG)}"); g.vi("fg")
        g.e(f"global_load_dwordx4 {vr(V_FU+4*r,4)}, v10, {sp(S_WU)}"); g.vi("fu")
        if r < 3: g.e("v_add_u32 v10, 3584, v10")
    g.e(f"s_lshl_b32 s{S_T0}, s{S_IDX}, 14")
    g.e(f"s_lshl_b32 s{S_T0+1}, s{S_WAVE}, 12")
    g.e(f"s_add_u32 s{S_T0}, s{S_T0}, s{S_T0+1}")
    g.e("v_lshlrev_b32 v10, 4, v1")
    g.e(f"v_add_u32 v10, s{S_T0}, v10")
    for r in range(4):
        g.e(f"global_load_dwordx4 {vr(V_FD+4*r,4)}, v10, {sp(S_WD)} offset:{r*1024}"); g.vi("fd")
    g.lab(skip)
    g.e(f"s_lshl_b32 s{S_T0}, s{S_H}, 17")
    g.e(f"s_lshl_b32 s{S_T0+1}, s{S_WAVE}, 15")
    g.e(f"s_add_u32 s{S_T0}, s{S_T0}, s{S_T0+1}")
    g.e("v_lshlrev_b32 v10, 4, v1")
    g.e(f"v_add_u32 v10, s{S_T0}, v10")
    for i in range(32):
        g.e(f"global_load_dwordx4 {vr(V_WO+4*i,4)}, v10, {sp(S_WO)} offset:{(i%4)*1024}"); g.vi("wo")
        if i % 4 == 3 and i < 31: g.e("v_add_u32 v10, 0x1000, v10")

def red2_store(g, slot_sexpr_reg):
    g.e(f"s_lshl_b32 s{S_T0}, s{S_WAVE}, 12")
    g.e("v_lshlrev_b32 v10, 5, v1")
    g.e(f"v_add_u32 v10, s{S_T0}, v10")
    g.nop(2)
    for b in range(2):
        for q in range(2):
            g.e(f"ds_write_b128 v10, {vr(V_ACC+8*b+4*q,4)} offset:{B_RED+b*2048+q*16}")
    g.e("s_waitcnt lgkmcnt(0)")
    g.e("s_barrier")
    g.e("v_lshlrev_b32 v10, 4, v0")
    for w in range(4):
        g.e(f"ds_read_b128 {vr(V_ACC+4*w,4)}, v10 offset:{B_RED+w*4096}")
    g.e("s_waitcnt lgkmcnt(0)")
    for q in range(4):
        g.e(f"v_add_f32 v{V_ACC+q}, v{V_ACC+q}, v{V_ACC+4+q}")
        g.e(f"v_add_f32 v{V_ACC+8+q}, v{V_ACC+8+q}, v{V_ACC+12+q}")
    for q in range(4):
        g.e(f"v_add_f32 v{V_ACC+q}, v{V_ACC+q}, v{V_ACC+8+q}")
        canon(g, V_ACC+q)
    g.e(f"s_lshl_b32 s{S_T0}, s{slot_sexpr_reg}, 12")
    g.e(f"s_add_u32 s{S_T0}, s{S_T0}, {OUTP_OFF}")
    g.e(f"v_add_u32 v10, s{S_T0}, v10")
    g.e(f"global_store_dwordx4 v10, {vr(V_ACC,4)}, {sp(S_WS)} sc1"); g.vi("st")

def B2_ffn(g):
    g.c("FFN (idx<112)")
    skip = g.nl("Lnoffn2")
    g.e(f"s_cmp_ge_u32 s{S_IDX}, 112")
    g.e(f"s_cbranch_scc1 {skip}")
    zero(g, V_ACC, 16)
    for t in range(2):
        dot_pairs(g, V_FG+8*t, V_FG+8*t+4, V_FX+t, V_FX+2+t, V_ACC)
    zero(g, V_FG, 16)
    for t in range(2):
        dot_pairs(g, V_FU+8*t, V_FU+8*t+4, V_FX+t, V_FX+2+t, V_FG)
    g.nop(3)
    g.e(f"s_lshl_b32 s{S_T0}, s{S_WAVE}, 12")
    g.e("v_lshlrev_b32 v10, 7, v12")
    g.e("v_lshlrev_b32 v11, 5, v13")
    g.e("v_add_u32 v10, v10, v11")
    g.e(f"v_add_u32 v10, s{S_T0}, v10")
    for mat, base in ((0, V_ACC), (1, V_FG)):
        for b in range(2):
            for q in range(2):
                g.e(f"ds_write_b128 v10, {vr(base+8*b+4*q,4)} offset:{B_RED+mat*16384+b*64+q*16}")
    g.e("s_waitcnt lgkmcnt(0)")
    g.e("s_barrier")
    g.e("v_cmp_gt_u32 vcc, 32, v0")
    g.e(f"s_and_saveexec_b64 {sp(S_EX)}, vcc")
    sk2 = g.nl("Lffn32")
    g.e(f"s_cbranch_execz {sk2}")
    g.e("v_lshlrev_b32 v10, 2, v0")
    g.e("v_mov_b32 v4, 0")
    g.e("v_mov_b32 v5, 0")
    for p0 in range(0, 128, 8):
        for p in range(8):
            g.e(f"ds_read_b32 v{V_ACC+p}, v10 offset:{B_RED+(p0+p)*128}")
            g.e(f"ds_read_b32 v{V_ACC+8+p}, v10 offset:{B_RED+16384+(p0+p)*128}")
        g.e("s_waitcnt lgkmcnt(0)")
        for p in range(8):
            g.e(f"v_add_f32 v4, v4, v{V_ACC+p}")
            g.e(f"v_add_f32 v5, v5, v{V_ACC+8+p}")
    g.e("v_mul_f32 v6, v4, v4")
    g.e(f"s_mov_b32 s{S_T0}, 0x3d122279")
    g.e(f"v_mov_b32 v7, 0x3f4c422a")
    g.e(f"v_fma_f32 v6, v6, s{S_T0}, v7")
    g.e("v_mul_f32 v6, v6, v4")
    g.e("v_mul_f32 v6, 0x4038aa3b, v6")
    g.e("v_exp_f32 v6, v6")
    g.nop(1)
    g.e("v_add_f32 v6, 1.0, v6")
    g.e("v_rcp_f32 v6, v6")
    g.nop(1)
    g.e("v_sub_f32 v6, 1.0, v6")
    g.e("v_mul_f32 v6, v6, v4")
    g.e("v_mul_f32 v6, v6, v5")
    g.e("v_cvt_pk_bf16_f32 v6, v6, v6")
    g.e("v_lshlrev_b32 v10, 1, v0")
    g.e(f"ds_write_b16 v10, v6 offset:{B_HBF}")
    g.lab(sk2)
    g.e(f"s_mov_b64 exec, {sp(S_EX)}")
    g.e("s_waitcnt lgkmcnt(0)")
    g.e("s_barrier")
    g.e(f"s_lshl_b32 s{S_T0}, s{S_WAVE}, 3")
    g.e(f"v_mov_b32 v10, s{S_T0}")
    for b in range(2):
        g.e(f"ds_read_b64 {vr(V_FX+2*b,2)}, v10 offset:{B_HBF+b*32}")
    zero(g, V_ACC, 16)
    g.e("s_waitcnt lgkmcnt(0)")
    for t in range(2):
        dot_pairs(g, V_FD+8*t, V_FD+8*t+4, V_FX+t, V_FX+2+t, V_ACC)
    g.nop(3)
    g.e(f"s_add_u32 s{S_T0+4}, s{S_IDX}, 128")
    red2_store(g, S_T0+4)
    g.e("s_barrier")
    g.lab(skip)

def B2_prep(g):
    g.c("pre-pair uv, wo in the shadow")
    for t in range(4):
        prepair(g, V_UV+8*t, V_UV+8*t+4)
    for t in range(16):
        prepair(g, V_WO+8*t, V_WO+8*t+4)

def wave_reduce(g, op, r, t):
    for ctl in ("quad_perm:[1,0,3,2]", "quad_perm:[2,3,0,1]", "row_half_mirror", "row_mirror"):
        g.nop(2)
        g.e(f"{op}_dpp v{r}, v{r}, v{r} {ctl} row_mask:0xf bank_mask:0xf")
    for sw in ("v_permlane16_swap_b32", "v_permlane32_swap_b32"):
        g.e(f"v_mov_b32 v{t}, v{r}")
        g.nop(2)
        g.e(f"{sw} v{r}, v{t}")
        g.nop(2)
        g.e(f"{op} v{r}, v{r}, v{t}")

V_PL = 192
def B2_s4(g):
    g.c("S4: combine partials")
    g.e(f"s_lshr_b32 s{S_B}, s{S_WAVE}, 1")
    g.e(f"s_and_b32 s{S_S}, s{S_WAVE}, 1")
    g.e(f"s_lshl_b32 s{S_T0}, s{S_B}, 5")
    g.e(f"s_add_u32 s{S_T0}, s{S_T0}, s{S_H}")
    g.e(f"s_lshl_b32 s{S_T0+1}, s{S_T0}, 9")
    g.e("v_lshlrev_b32 v12, 3, v1")
    g.e(f"v_add_u32 v12, s{S_T0+1}, v12")
    g.e(f"s_lshl_b32 s{S_T0+1}, s{S_T0}, 16")
    g.e(f"s_lshl_b32 s{S_T0+2}, s{S_S}, 15")
    g.e(f"s_add_u32 s{S_T0+1}, s{S_T0+1}, s{S_T0+2}")
    g.e(f"s_lshl_b32 s{S_T0+2}, s{S_J}, 8")
    g.e(f"s_add_u32 s{S_T0+1}, s{S_T0+1}, s{S_T0+2}")
    g.e(f"s_add_u32 s{S_T0+1}, s{S_T0+1}, {PART_OFF}")
    g.e("v_lshlrev_b32 v13, 10, v2")
    g.e("v_lshlrev_b32 v11, 4, v3")
    g.e("v_add_u32 v13, v13, v11")
    g.e(f"v_add_u32 v13, s{S_T0+1}, v13")
    def issue():
        g.e(f"global_load_dwordx2 v[48:49], v12, {sp(S_WS)} offset:0 sc1".replace("v12,", "v12,"))
        g.e("v_mov_b32 v10, v13")
        for i in range(8):
            g.e(f"global_load_dwordx4 {vr(V_PL+4*i,4)}, v10, {sp(S_WS)} sc1")
            if i < 7: g.e("v_add_u32 v10, 0x1000, v10")
    g.e(f"v_add_u32 v12, {STAT_OFF}, v12")
    poll(g, issue, [48, 49] + list(range(V_PL, V_PL+32)), 4)
    g.e("v_mov_b32 v50, v48")
    wave_reduce(g, "v_max_f32", 50, 51)
    g.e("v_sub_f32 v50, v48, v50")
    g.e("v_exp_f32 v50, v50")
    g.nop(1)
    g.e("v_mul_f32 v52, v50, v49")
    wave_reduce(g, "v_add_f32", 52, 51)
    g.e("v_rcp_f32 v52, v52")
    g.nop(1)
    g.e("v_mul_f32 v50, v50, v52")
    g.e(f"s_lshl_b32 s{S_T0}, s{S_S}, 7")
    g.e("v_lshlrev_b32 v10, 2, v2")
    g.e(f"v_add_u32 v10, s{S_T0}, v10")
    for i in range(8):
        g.e(f"ds_bpermute_b32 v{52+i}, v10, v50 offset:{16*i}")
    zero(g, V_ACC, 8)
    g.e("s_waitcnt lgkmcnt(0)")
    for i in range(8):
        for q in range(4):
            r = V_PL+4*i+q
            g.e(f"v_lshlrev_b32 v4, 16, v{r}")
            g.e(f"v_and_b32 v5, 0xffff0000, v{r}")
            g.e(f"v_fmac_f32 v{V_ACC+2*q}, v{52+i}, v4")
            g.e(f"v_fmac_f32 v{V_ACC+2*q+1}, v{52+i}, v5")
    g.e(f"s_lshl_b32 s{S_T0}, s{S_WAVE}, 11")
    g.e("v_lshlrev_b32 v10, 9, v2")
    g.e("v_lshlrev_b32 v11, 5, v3")
    g.e("v_add_u32 v10, v10, v11")
    g.e(f"v_add_u32 v10, s{S_T0}, v10")
    for q in range(2):
        g.e(f"ds_write_b128 v10, {vr(V_ACC+4*q,4)} offset:{B_RED+q*16}")
    g.e("s_waitcnt lgkmcnt(0)")
    g.e("s_barrier")
    g.e("v_lshrrev_b32 v10, 7, v0")
    g.e("v_lshlrev_b32 v10, 12, v10")
    g.e("v_and_b32 v11, 127, v0")
    g.e("v_lshlrev_b32 v11, 2, v11")
    g.e("v_add_u32 v10, v10, v11")
    for p in range(8):
        g.e(f"ds_read_b32 v{48+p}, v10 offset:{B_RED+p*512}")
    g.e("s_waitcnt lgkmcnt(0)")
    for n in (4, 2, 1):
        for p in range(n):
            g.e(f"v_add_f32 v{48+p}, v{48+p}, v{48+p+n}")
    g.e("v_cvt_pk_bf16_f32 v48, v48, v48")
    g.e("v_lshlrev_b32 v10, 1, v0")
    g.e(f"ds_write_b16 v10, v48 offset:{B_CTXC}")
    g.e("s_waitcnt lgkmcnt(0)")
    g.e("s_barrier")
    g.c("uv")
    g.e(f"s_lshl_b32 s{S_T0}, s{S_WAVE}, 6")
    g.e("v_lshlrev_b32 v10, 4, v2")
    g.e(f"v_add_u32 v10, s{S_T0}, v10")
    for b in range(2):
        g.e(f"ds_read_b128 {vr(48+4*b,4)}, v10 offset:{B_CTXC+b*256}")
    zero(g, V_ACC, 16)
    g.e("s_waitcnt lgkmcnt(0)")
    for t in range(4):
        dot_prepaired(g, V_UV+8*t, V_UV+8*t+4, 48+t, 52+t, V_ACC)
    g.nop(3)
    red_write16(g)
    red_sum(g, 16, 1024, B_CTXP, 192)
    g.c("o-proj")
    g.e(f"s_lshl_b32 s{S_T0}, s{S_WAVE}, 6")
    g.e(f"v_mov_b32 v10, s{S_T0}")
    for b in range(2):
        for q in range(4):
            g.e(f"ds_read_b128 {vr(192+16*b+4*q,4)}, v10 offset:{B_CTXP+b*256+q*16}")
    zero(g, V_ACC, 16)
    g.e("s_waitcnt lgkmcnt(0)")
    for t in range(16):
        dot_prepaired(g, V_WO+8*t, V_WO+8*t+4, 192+t, 208+t, V_ACC)
    g.nop(3)
    red2_store(g, S_IDX)

A_QC = 131072
A_PF = 0
A_MX = 8192
A_LS = 8192 + 512
A_OUT = 0

def swz(r):
    return ((r & 3) << 2) | ((r >> 2) & 3)

def roleA_ids(g):
    g.e(f"s_lshr_b32 s{S_B}, s{S_IDX}, 6")
    g.e(f"s_and_b32 s{S_S}, s{S_IDX}, 63")

def A_dma(g):
    g.c("c_kv tile DMA")
    g.e(f"s_lshl_b32 s{S_T0}, s{S_B}, 23")
    g.e(f"s_lshl_b32 s{S_T0+1}, s{S_S}, 17")
    g.e(f"s_add_u32 s{S_T0}, s{S_T0}, s{S_T0+1}")
    g.e(f"s_lshl_b32 s{S_T0+1}, s{S_WAVE}, 15")
    g.e(f"s_add_u32 s{S_T0}, s{S_T0}, s{S_T0+1}")
    g.e(f"s_add_u32 s54, s{S_CKV}, s{S_T0}")
    g.e(f"s_addc_u32 s55, s{S_CKV+1}, 0")
    g.e("s_add_u32 s56, s54, 16384")
    g.e("s_addc_u32 s57, s55, 0")
    for i in range(16):
        g.e(f"v_xor_b32 v{16+i}, {swz(i)}, v1")
        g.e(f"v_lshlrev_b32 v{16+i}, 4, v{16+i}")
        if i & 12:
            g.e(f"v_add_u32 v{16+i}, {(i&12)*1024}, v{16+i}")
    g.e(f"s_lshl_b32 s{S_T0}, s{S_WAVE}, 15")
    for q in range(2):
        for i0 in range(0, 16, 4):
            g.e(f"s_add_u32 s{S_T0+1}, s{S_T0}, {q*16384+i0*1024}")
            g.e(f"s_mov_b32 m0, s{S_T0+1}")
            g.e("s_nop 0")
            for i in range(i0, i0+4):
                g.e(f"global_load_lds_dwordx4 v{16+i}, s[{54+2*q}:{55+2*q}] offset:{(i&3)*1024}"); g.vi("dma")

V_QL = 64
def A_qc(g):
    g.c("QC load + stage to LDS")
    g.e(f"s_lshl_b32 s{S_T0}, s{S_B}, 15")
    g.e("v_lshlrev_b32 v12, 4, v0")
    g.e(f"v_add_u32 v12, s{S_T0}, v12")
    def issue():
        g.e("v_mov_b32 v10, v12")
        for i in range(8):
            g.e(f"global_load_dwordx4 {vr(V_QL+4*i,4)}, v10, {sp(S_WS)} sc1")
            if i < 7: g.e("v_add_u32 v10, 0x1000, v10")
    poll(g, issue, list(range(V_QL, V_QL+32)), 4)
    g.e(f"s_lshl_b32 s{S_T0}, s{S_WAVE}, 2")
    g.e(f"s_lshl_b32 s{S_T0+1}, s{S_WAVE}, 10")
    g.e(f"s_add_u32 s{S_T0+1}, s{S_T0+1}, {A_QC}")
    for i in range(4):
        g.e(f"v_xor_b32 v{4+i}, {i}, v1")
        g.e(f"v_xor_b32 v{4+i}, s{S_T0}, v{4+i}")
        g.e(f"v_lshlrev_b32 v{4+i}, 4, v{4+i}")
        g.e(f"v_add_u32 v{4+i}, s{S_T0+1}, v{4+i}")
    for i in range(8):
        g.e(f"ds_write_b128 v{4+(i&3)}, {vr(V_QL+4*i,4)} offset:{i*4096}")
    g.e("s_waitcnt lgkmcnt(0)")
    g.e("s_barrier")

V_SA = 16
V_SB = 24
V_S = 32
V_BUF = 96
def A_qk(g):
    g.c("QK^T")
    g.e("v_and_b32 v4, 31, v1")
    g.e("v_lshrrev_b32 v5, 5, v1")
    g.e("v_and_b32 v6, 3, v1")
    g.e("v_lshlrev_b32 v6, 2, v6")
    g.e("v_lshrrev_b32 v7, 2, v1")
    g.e("v_and_b32 v7, 3, v7")
    g.e("v_or_b32 v6, v6, v7")
    g.e("v_lshlrev_b32 v4, 10, v4")
    g.e(f"s_lshl_b32 s{S_T0}, s{S_WAVE}, 15")
    for ep in range(8):
        g.e(f"v_add_u32 v7, {2*ep}, v5")
        g.e("v_xor_b32 v7, v7, v6")
        g.e("v_lshlrev_b32 v7, 4, v7")
        g.e("v_add_u32 v7, v7, v4")
        g.e(f"v_add_u32 v{V_SA+ep}, s{S_T0}, v7")
        g.e(f"v_add_u32 v{V_SB+ep}, {A_QC}, v7")
    zero(g, V_S, 16)
    def rd(s):
        a, ep = s // 8, s % 8
        bb = V_BUF + 8*(s % 4)
        g.e(f"ds_read_b128 {vr(bb,4)}, v{V_SA+ep} offset:{a*256}")
        g.e(f"ds_read_b128 {vr(bb+4,4)}, v{V_SB+ep} offset:{a*256}")
    for s in range(4): rd(s)
    for s in range(32):
        out = min(3, 31 - s) * 2
        g.e(f"s_waitcnt lgkmcnt({out})")
        bb = V_BUF + 8*(s % 4)
        g.e(f"v_mfma_f32_32x32x16_bf16 {vr(V_S,16)}, {vr(bb,4)}, {vr(bb+4,4)}, {vr(V_S,16)}")
        if s + 4 < 32: rd(s + 4)
    g.e("s_barrier")
    g.nop(12)

V_PFR = 128
def A_softmax(g):
    g.c("softmax")
    g.e(f"v_max3_f32 v4, v{V_S}, v{V_S+1}, v{V_S+2}")
    for i in range(3, 15, 2):
        g.e(f"v_max3_f32 v4, v4, v{V_S+i}, v{V_S+i+1}")
    g.e(f"v_max_f32 v4, v4, v{V_S+15}")
    g.e("v_mov_b32 v5, v4")
    g.nop(2)
    g.e("v_permlane32_swap_b32 v4, v5")
    g.nop(2)
    g.e("v_max_f32 v4, v4, v5")
    g.e("v_and_b32 v6, 31, v1")
    g.e("v_lshlrev_b32 v6, 2, v6")
    g.e(f"v_add_u32 v6, {A_QC}, v6")
    g.e(f"s_lshl_b32 s{S_T0}, s{S_WAVE}, 7")
    g.e(f"v_add_u32 v7, s{S_T0}, v6")
    g.e(f"ds_write_b32 v7, v4 offset:{A_MX}")
    g.e("s_waitcnt lgkmcnt(0)")
    g.e("s_barrier")
    for w in range(4):
        g.e(f"ds_read_b32 v{8+w}, v6 offset:{A_MX+w*128}")
    g.e("s_waitcnt lgkmcnt(0)")
    g.e("v_max3_f32 v8, v8, v9, v10")
    g.e("v_max_f32 v8, v8, v11")
    g.e(f"s_mov_b32 s{S_T0+1}, 0x3e0293ee")
    g.e(f"v_mul_f32 v8, s{S_T0+1}, v8")
    for i in range(16):
        g.e(f"v_fma_f32 v{V_S+i}, v{V_S+i}, s{S_T0+1}, -v8")
    for i in range(16):
        g.e(f"v_exp_f32 v{V_S+i}, v{V_S+i}")
    g.nop(1)
    g.e(f"v_add_f32 v9, v{V_S}, v{V_S+1}")
    for i in range(2, 16):
        g.e(f"v_add_f32 v9, v9, v{V_S+i}")
    g.e("v_mov_b32 v10, v9")
    g.nop(2)
    g.e("v_permlane32_swap_b32 v9, v10")
    g.nop(2)
    g.e("v_add_f32 v9, v9, v10")
    g.e(f"ds_write_b32 v7, v9 offset:{A_LS}")
    for t in range(2):
        for q in range(4):
            g.e(f"v_cvt_pk_bf16_f32 v{12+q}, v{V_S+8*t+2*q}, v{V_S+8*t+2*q+1}") if t == 0 else g.e(f"v_cvt_pk_bf16_f32 v{V_S+q}, v{V_S+8*t+2*q}, v{V_S+8*t+2*q+1}")
    g.e(f"s_lshl_b32 s{S_T0}, s{S_WAVE}, 11")
    g.e("v_lshlrev_b32 v11, 4, v1")
    g.e(f"v_add_u32 v11, {A_QC}, v11")
    g.e(f"v_add_u32 v7, s{S_T0}, v11")
    g.e(f"ds_write_b128 v7, v[12:15] offset:{A_PF}")
    g.e(f"ds_write_b128 v7, {vr(V_S,4)} offset:{A_PF+1024}")
    g.e("s_waitcnt lgkmcnt(0)")
    g.e("s_barrier")
    for ks in range(8):
        g.e(f"ds_read_b128 {vr(V_PFR+4*ks,4)}, v11 offset:{A_PF+ks*1024}")
    for w in range(4):
        g.e(f"ds_read_b32 v{12+w}, v6 offset:{A_LS+w*128}")
    g.e("s_waitcnt lgkmcnt(0)")
    g.e("v_add_f32 v12, v12, v13")
    g.e("v_add_f32 v14, v14, v15")
    g.e("v_add_f32 v9, v12, v14")
    sk = g.nl("Lst")
    g.e(f"s_cmp_lg_u32 s{S_WAVE}, 0")
    g.e(f"s_cbranch_scc1 {sk}")
    g.e(f"s_lshl_b32 s{S_T0}, s{S_B}, 14")
    g.e(f"s_lshl_b32 s{S_T0+1}, s{S_S}, 3")
    g.e(f"s_add_u32 s{S_T0}, s{S_T0}, s{S_T0+1}")
    g.e(f"s_add_u32 s{S_T0}, s{S_T0}, {STAT_OFF}")
    g.e("v_and_b32 v10, 31, v1")
    g.e("v_lshlrev_b32 v10, 9, v10")
    g.e(f"v_add_u32 v10, s{S_T0}, v10")
    g.e("v_cmp_gt_u32 vcc, 32, v1")
    g.e(f"s_and_saveexec_b64 {sp(S_EX)}, vcc")
    g.e(f"global_store_dwordx2 v10, v[8:9], {sp(S_WS)} sc1")
    g.e(f"s_mov_b64 exec, {sp(S_EX)}")
    g.lab(sk)
    g.vi("st")

V_PA = 16
V_O = 192
V_PB = 96
def A_pv(g):
    g.c("PV")
    g.e("v_lshrrev_b32 v4, 2, v1")
    g.e("v_and_b32 v4, 3, v4")
    g.e("v_lshrrev_b32 v5, 4, v1")
    g.e("v_and_b32 v5, 1, v5")
    g.e("v_lshlrev_b32 v5, 1, v5")
    g.e("v_lshrrev_b32 v6, 1, v1")
    g.e("v_and_b32 v6, 1, v6")
    g.e("v_or_b32 v5, v5, v6")
    g.e("v_lshrrev_b32 v6, 5, v1")
    g.e("v_and_b32 v7, 1, v1")
    g.e("v_lshlrev_b32 v7, 3, v7")
    g.e("v_lshlrev_b32 v8, 2, v6")
    g.e("v_add_u32 v8, v8, v4")
    g.e("v_lshlrev_b32 v8, 10, v8")
    g.e("v_add_u32 v8, v8, v7")
    g.e(f"s_lshl_b32 s{S_T0}, s{S_WAVE}, 8")
    g.e(f"v_add_u32 v8, s{S_T0}, v8")
    for ctl in range(4):
        for u in range(2):
            g.e(f"v_xor_b32 v9, {ctl}, v4")
            g.e("v_lshlrev_b32 v9, 2, v9")
            g.e(f"v_add_u32 v10, {2*u}, v6")
            g.e("v_xor_b32 v10, v10, v5")
            g.e("v_or_b32 v9, v9, v10")
            g.e("v_lshlrev_b32 v9, 4, v9")
            g.e("v_add_u32 v9, v9, v8")
            g.e(f"v_add_u32 v{V_PA+2*ctl+u}, {u*8192}, v9")
            g.e(f"v_add_u32 v{V_PA+8+2*ctl+u}, {u*8192+65536}, v9")
    zero(g, V_O, 64)
    steps = [(ks, ctl) for ks in range(8) for ctl in range(4)]
    def rd(n):
        ks, ctl = steps[n]
        bb = V_PB + 4*(n % 4)
        hi = 8 if ks >= 4 else 0
        for u in range(2):
            g.e(f"ds_read_b64_tr_b16 {vr(bb+2*u,2)}, v{V_PA+hi+2*ctl+u} offset:{(ks%4)*16384}")
    for n in range(4): rd(n)
    for n in range(32):
        ks, ctl = steps[n]
        out = min(3, 31 - n) * 2
        g.e(f"s_waitcnt lgkmcnt({out})")
        bb = V_PB + 4*(n % 4)
        g.e(f"v_mfma_f32_32x32x16_bf16 {vr(V_O+16*ctl,16)}, {vr(bb,4)}, {vr(V_PFR+4*ks,4)}, {vr(V_O+16*ctl,16)}")
        if n + 4 < 32: rd(n + 4)
    g.e("s_barrier")
    g.nop(12)
    g.c("transpose via LDS and store")
    g.e("v_and_b32 v4, 31, v1")
    g.e(f"v_mov_b32 v5, 1040")
    g.e("v_mul_lo_u32 v4, v4, v5")
    g.e("v_lshlrev_b32 v5, 3, v6")
    g.e("v_add_u32 v4, v4, v5")
    g.e(f"s_lshl_b32 s{S_T0}, s{S_WAVE}, 8")
    g.e(f"v_add_u32 v4, s{S_T0}, v4")
    for ctl in range(4):
        for gg in range(4):
            r = V_O + 16*ctl + 4*gg
            t = 8 + 2*(gg & 1)
            g.e(f"v_cvt_pk_bf16_f32 v{t}, v{r}, v{r+1}")
            g.e(f"v_cvt_pk_bf16_f32 v{t+1}, v{r+2}, v{r+3}")
            g.e(f"ds_write_b64 v4, {vr(t,2)} offset:{A_OUT+ctl*64+gg*16}")
    g.e("s_waitcnt lgkmcnt(0)")
    g.e("s_barrier")
    g.e(f"s_mul_i32 s{S_T0}, s{S_WAVE}, {8*1040}")
    g.e("v_lshlrev_b32 v4, 4, v1")
    g.e(f"v_add_u32 v5, s{S_T0}, v4")
    for r in range(8):
        g.e(f"ds_read_b128 {vr(64+4*r,4)}, v5 offset:{A_OUT+r*1040}")
    g.e(f"s_lshl_b32 s{S_T0}, s{S_B}, 21")
    g.e(f"s_lshl_b32 s{S_T0+1}, s{S_WAVE}, 19")
    g.e(f"s_add_u32 s{S_T0}, s{S_T0}, s{S_T0+1}")
    g.e(f"s_lshl_b32 s{S_T0+1}, s{S_S}, 10")
    g.e(f"s_add_u32 s{S_T0}, s{S_T0}, s{S_T0+1}")
    g.e(f"s_add_u32 s{S_T0}, s{S_T0}, {PART_OFF}")
    g.e(f"v_add_u32 v4, s{S_T0}, v4")
    for r in range(8):
        g.e(f"s_waitcnt lgkmcnt({7-r})")
        for q in range(4): canon(g, 64+4*r+q)
        g.e(f"global_store_dwordx4 v4, {vr(64+4*r,4)}, {sp(S_WS)} sc1"); g.vi("st")
        if r < 7: g.e("v_add_u32 v4, 0x10000, v4")

F_RED = 0
def F_gate_loads(g):
    g.e(f"s_lshr_b32 s{S_T0}, s{S_IDX}, 4")
    g.e(f"s_lshl_b32 s{S_T0}, s{S_T0}, 10")
    g.e("v_lshlrev_b32 v10, 4, v1")
    g.e(f"v_add_u32 v11, s{S_T0}, v10")
    g.e(f"global_load_dwordx4 v[240:243], v11, {sp(S_X)}"); g.vi("gx")
    g.e(f"global_load_dwordx4 v[244:247], v10, {sp(S_GW)}"); g.vi("gx")

def F_gate(g):
    g.vw("gx")
    g.e("v_mov_b32 v248, 0")
    for q in range(4):
        g.e(f"v_dot2c_f32_bf16 v248, v{240+q}, v{244+q}")
    g.nop(3)
    wave_reduce(g, "v_add_f32", 248, 249)
    g.e("v_mul_f32 v248, 0xbfb8aa3b, v248")
    g.e("v_exp_f32 v248, v248")
    g.nop(1)
    g.e("v_add_f32 v248, 1.0, v248")
    g.e("v_rcp_f32 v248, v248")
    g.nop(2)
    g.e("v_readfirstlane_b32 s60, v248")

def F_final(g):
    g.c("final reduce (idx<32)")
    g.e(f"s_lshl_b32 s{S_T0}, s{S_WAVE}, 15")
    g.e(f"s_lshl_b32 s{S_T0+1}, s{S_IDX}, 7")
    g.e(f"s_add_u32 s{S_T0}, s{S_T0}, s{S_T0+1}")
    g.e(f"s_add_u32 s{S_T0}, s{S_T0}, {OUTP_OFF}")
    g.e("v_lshrrev_b32 v12, 3, v1")
    g.e("v_lshlrev_b32 v12, 12, v12")
    g.e("v_and_b32 v13, 7, v1")
    g.e("v_lshlrev_b32 v13, 4, v13")
    g.e("v_add_u32 v12, v12, v13")
    g.e(f"v_add_u32 v12, s{S_T0}, v12")
    zero(g, 92, 4)
    def issue():
        g.e("v_mov_b32 v10, v12")
        for r in range(7):
            g.e(f"global_load_dwordx4 {vr(64+4*r,4)}, v10, {sp(S_WS)} sc1")
            g.e("v_add_u32 v10, 0x20000, v10")
        sk = g.nl("Lf7")
        g.e(f"s_cmp_ge_u32 s{S_WAVE}, 2")
        g.e(f"s_cbranch_scc1 {sk}")
        g.e(f"global_load_dwordx4 {vr(92,4)}, v10, {sp(S_WS)} sc1")
        g.lab(sk)
    poll(g, issue, list(range(64, 96)), 4)
    for q in range(4):
        g.e(f"v_add_f32 v{64+q}, v{64+q}, v{68+q}")
        g.e(f"v_add_f32 v{72+q}, v{72+q}, v{76+q}")
        g.e(f"v_add_f32 v{80+q}, v{80+q}, v{84+q}")
        g.e(f"v_add_f32 v{88+q}, v{88+q}, v{92+q}")
    for q in range(4):
        g.e(f"v_add_f32 v{64+q}, v{64+q}, v{72+q}")
        g.e(f"v_add_f32 v{68+q}, v{80+q}, v{88+q}")
    g.e(f"s_lshl_b32 s{S_T0}, s{S_WAVE}, 10")
    g.e("v_lshrrev_b32 v10, 3, v1")
    g.e("v_lshlrev_b32 v10, 7, v10")
    g.e("v_add_u32 v10, v10, v13")
    g.e(f"v_add_u32 v10, s{S_T0}, v10")
    g.e(f"ds_write_b128 v10, v[64:67] offset:{F_RED}")
    g.e(f"ds_write_b128 v10, v[68:71] offset:{F_RED+4096}")
    g.e("s_waitcnt lgkmcnt(0)")
    g.e("s_barrier")
    sk = g.nl("Lfin")
    g.e(f"s_cmp_lg_u32 s{S_WAVE}, 0")
    g.e(f"s_cbranch_scc1 {sk}")
    g.e("v_lshrrev_b32 v10, 5, v1")
    g.e("v_lshlrev_b32 v10, 12, v10")
    g.e("v_and_b32 v11, 31, v1")
    g.e("v_lshlrev_b32 v11, 2, v11")
    g.e("v_add_u32 v10, v10, v11")
    for p in range(32):
        g.e(f"ds_read_b32 v{64+p}, v10 offset:{F_RED+p*128}")
    g.e("s_waitcnt lgkmcnt(0)")
    for n in (16, 8, 4, 2, 1):
        for p in range(n):
            g.e(f"v_add_f32 v{64+p}, v{64+p}, v{64+p+n}")
    g.e("v_mov_b32 v248, s60")
    g.e("v_sub_f32 v5, 1.0, v248")
    g.e("v_cmp_gt_u32 vcc, 32, v1")
    g.nop(2)
    g.e("v_cndmask_b32 v5, v5, v248, vcc")
    g.e("v_mul_f32 v64, v64, v5")
    g.e("v_mov_b32 v65, v64")
    g.nop(2)
    g.e("v_permlane32_swap_b32 v64, v65")
    g.nop(2)
    g.e("v_add_f32 v64, v64, v65")
    g.nop(2)
    g.e("v_mov_b32_dpp v65, v64 quad_perm:[1,0,3,2] row_mask:0xf bank_mask:0xf")
    g.e("v_cvt_pk_bf16_f32 v64, v64, v65")
    g.e(f"s_lshl_b32 s{S_T0}, s{S_IDX}, 6")
    g.e("v_lshrrev_b32 v10, 1, v1")
    g.e("v_lshlrev_b32 v10, 2, v10")
    g.e(f"v_add_u32 v10, s{S_T0}, v10")
    g.e("v_and_b32 v11, 33, v1")
    g.e("v_cmp_eq_u32 vcc, 0, v11")
    g.e(f"s_and_saveexec_b64 {sp(S_EX)}, vcc")
    g.e(f"global_store_dword v10, v64, {sp(S_OUT)}")
    g.e(f"s_mov_b64 exec, {sp(S_EX)}")
    g.lab(sk)

def header(launches):
    s = open("cdna_kernels/" + KNAME[:-7] + ".s.ref").read().split("\n")
    hdr = [l for l in s if l.startswith(";") and "@launch" not in l]
    return "\n".join(hdr) + "\n" + "\n".join(launches) + "\n" + '.amdgcn_target "amdgcn-amd-amdhsa--gfx950"\n.text\n'

def kernel_open(name):
    return f".globl {name}\n.p2align 8\n.type {name},@function\n{name}:\n"

def kd(name, nv=256):
    return f""".amdhsa_kernel {name}
  .amdhsa_next_free_vgpr {nv}
  .amdhsa_next_free_sgpr 102
  .amdhsa_accum_offset {nv}
  .amdhsa_group_segment_fixed_size 0
  .amdhsa_kernarg_size 112
  .amdhsa_user_sgpr_count 2
  .amdhsa_user_sgpr_kernarg_segment_ptr 1
  .amdhsa_system_sgpr_workgroup_id_x 1
.end_amdhsa_kernel
"""

def build_multi():
    ks = []
    g = G(); prologue(g, 256, "k0_end"); fill(g); g.lab("k0_end"); g.e("s_endpgm"); ks.append(("k0_fill_kernel", 256, g))
    g = G(); prologue(g, 128, "k1_end"); g.e(f"s_mov_b32 s{S_IDX}, s2"); roleB_ids(g); B1_loads(g, with_uv=False); B1_compute(g); B1_store(g)
    g.lab("k1_end"); g.e("s_endpgm"); ks.append(("k1_b1_kernel", 128, g))
    g = G(); prologue(g, 128, "k2_end"); g.e(f"s_mov_b32 s{S_IDX}, s2"); roleA_ids(g); A_dma(g); A_qc(g); A_qk(g); A_softmax(g); A_pv(g)
    g.lab("k2_end"); g.e("s_endpgm"); ks.append(("k2_attn_kernel", 128, g))
    g = G(); prologue(g, 128, "k3_end"); g.e(f"s_mov_b32 s{S_IDX}, s2"); roleB_ids(g); B2_loads(g, with_uv=True); g.vw0(); B2_ffn(g); B2_prep(g); B2_s4(g)
    g.lab("k3_end"); g.e("s_endpgm"); ks.append(("k3_b2_kernel", 128, g))
    g = G(); prologue(g, 32, "k4_end"); g.e(f"s_mov_b32 s{S_IDX}, s2"); F_gate_loads(g); F_gate(g); F_final(g)
    g.lab("k4_end"); g.e("s_endpgm"); ks.append((KNAME, 32, g))
    launches = [f"; @launch kernel={n} grid=({w},1,1) block=(256,1,1) lds={LDS_BYTES}" for n, w, _ in ks]
    s = header(launches)
    for n, w, g in ks:
        s += kernel_open(n) + "\n".join(g.L) + "\n"
    s += '.section .rodata,"a"\n.p2align 6\n'
    for n, w, g in ks:
        s += kd(n) + ".p2align 6\n"
    return s

def build_fused():
    g = G()
    prologue(g, 256, "k_end")
    fill(g)
    g.e("s_cmp_ge_u32 s2, 128")
    g.e("s_cbranch_scc1 role_a")
    vm_save = list(g.vm)
    g.e(f"s_mov_b32 s{S_IDX}, s2")
    roleB_ids(g)
    B1_loads(g, with_uv=True)
    fill_signal(g)
    B1_compute(g)
    fill_wait(g)
    B1_store(g)
    B2_loads(g)
    g.vw0()
    B2_ffn(g)
    B2_prep(g)
    B2_s4(g)
    g.e("s_endpgm")
    g.lab("role_a")
    g.vm = vm_save
    g.e(f"s_sub_u32 s{S_IDX}, s2, 128")
    roleA_ids(g)
    A_dma(g)
    F_gate_loads(g)
    fill_signal(g)
    F_gate(g)
    fill_wait(g)
    A_qc(g)
    A_qk(g)
    A_softmax(g)
    A_pv(g)
    g.e(f"s_cmp_ge_u32 s{S_IDX}, 32")
    g.e("s_cbranch_scc1 k_end")
    g.e("s_barrier")
    F_final(g)
    g.lab("k_end")
    g.e("s_endpgm")
    launches = [f"; @launch grid=(256,1,1) block=(256,1,1) lds={LDS_BYTES}"]
    s = header(launches)
    s += kernel_open(KNAME) + "\n".join(g.L) + "\n"
    s += '.section .rodata,"a"\n.p2align 6\n' + kd(KNAME)
    return s

if __name__ == "__main__":
    mode = sys.argv[1]
    out = sys.argv[2]
    s = build_multi() if mode == "multi" else build_fused()
    open(out, "w").write(s)
```

```python
import sys

KNAME = "gated_mix__compressed_kv_cla__geglu_ffn__decode_kernel"

QC_OFF   = 0
STAT_OFF = 0x10000
OUTP_OFF = 0x20000
PART_OFF = 0x120000
LDS_BYTES = 163840
MAXIT = 200000

class G:
    N = [0]
    def __init__(self):
        self.L = []
        self.vm = []
    def e(self, s):
        self.L.append("  " + s)
    def c(self, s):
        self.L.append("  ; " + s)
    def lab(self, s):
        self.L.append(s + ":")
    def nl(self, p="L"):
        G.N[0] += 1
        return f"{p}_{G.N[0]}"
    def vi(self, tag):
        self.vm.append(tag)
        assert len(self.vm) <= 63, "too many outstanding vmem"
    def vw(self, tag):
        idx = max(i for i, t in enumerate(self.vm) if t == tag)
        n = len(self.vm) - 1 - idx
        self.e(f"s_waitcnt vmcnt({n})")
        self.vm = self.vm[idx + 1:]
    def vw0(self):
        self.e("s_waitcnt vmcnt(0)")
        self.vm = []
    def nop(self, n):
        self.e(f"s_nop {n-1}")

TS_OFF = 0x600000
STAMPS = False
def stamp(g, i):
    if STAMPS:
        g.e(f"s_memrealtime s[{64+2*i}:{65+2*i}]")
def stamp_flush(g, n=16):
    if not STAMPS: return
    lab = g.nl("Lts")
    g.e(f"s_cmp_lg_u32 s{S_WAVE}, 0")
    g.e(f"s_cbranch_scc1 {lab}")
    g.e("s_waitcnt lgkmcnt(0)")
    g.e("s_lshl_b32 s40, s2, 6")
    g.e(f"s_add_u32 s40, s40, {TS_OFF}")
    g.e("v_mov_b32 v5, s40")
    g.e("v_cmp_eq_u32 vcc, 0, v0")
    g.e("s_and_saveexec_b64 s[48:49], vcc")
    for i in range(n):
        g.e(f"v_mov_b32 v4, s{64+2*i}")
        g.e(f"global_store_dword v5, v4, s[30:31] offset:{4*i}")
    g.e("s_mov_b64 exec, s[48:49]")
    g.lab(lab)

def vr(a, n):
    return f"v[{a}:{a+n-1}]" if n > 1 else f"v{a}"

S_X, S_CKV, S_WQ, S_WUK, S_WUV, S_WO, S_BX, S_WG, S_WU, S_WD, S_GW, S_OUT, S_DBG, S_WS = [4 + 2*i for i in range(14)]
def sp(a): return f"s[{a}:{a+1}]"
S_WAVE = 33
S_H = 34
S_J = 35
S_SELLO = 36
S_SELHI = 37
S_CNT = 38
S_T0 = 40
S_EX = 48
S_B = 50
S_S = 51
S_IDX = 52

def prologue(g, nwg, endlab):
    g.e(f"s_cmp_ge_u32 s2, {nwg}")
    g.e(f"s_cbranch_scc1 {endlab}")
    g.e("s_load_dwordx16 s[4:19], s[0:1], 0")
    g.e("s_load_dwordx8 s[20:27], s[0:1], 64")
    g.e("s_load_dwordx4 s[28:31], s[0:1], 96")
    g.e("v_and_b32 v1, 63, v0")
    g.e("v_lshrrev_b32 v2, 6, v0")
    g.e("s_nop 0")
    g.e(f"v_readfirstlane_b32 s{S_WAVE}, v2")
    g.e(f"s_mov_b32 s{S_SELLO}, 0x05040100")
    g.e(f"s_mov_b32 s{S_SELHI}, 0x07060302")
    g.e("s_waitcnt lgkmcnt(0)")

def fill(g):
    g.c("sentinel fill (service wave)")
    for i in range(4):
        g.e(f"v_mov_b32 v{4+i}, -1")
    g.e("v_lshlrev_b32 v8, 4, v1")
    g.e(f"s_lshl_b32 s{S_T0}, s{S_IDX}, 13")
    g.e(f"s_add_u32 s{S_T0}, s{S_T0}, {OUTP_OFF}")
    g.e(f"v_add_u32 v9, s{S_T0}, v8")
    for i in range(8):
        g.e(f"global_store_dwordx4 v9, v[4:7], {sp(S_WS)} offset:{(i%4)*1024} sc1")
        if i == 3: g.e("v_add_u32 v9, 0x1000, v9")
    g.e(f"s_mul_i32 s{S_T0}, s{S_IDX}, 768")
    g.e(f"v_add_u32 v9, s{S_T0}, v8")
    g.e("v_cmp_gt_u32 vcc, 48, v1")
    g.e(f"s_and_saveexec_b64 {sp(S_EX)}, vcc")
    g.e(f"global_store_dwordx4 v9, v[4:7], {sp(S_WS)} sc1")
    g.e(f"s_mov_b64 exec, {sp(S_EX)}")
    g.e("s_waitcnt vmcnt(0)")
    g.e("v_cmp_eq_u32 vcc, 0, v1")
    g.e(f"s_and_saveexec_b64 {sp(S_EX)}, vcc")
    g.e(f"s_and_b32 s{S_T0}, s{S_IDX}, 7")
    g.e(f"s_lshl_b32 s{S_T0}, s{S_T0}, 2")
    g.e(f"v_mov_b32 v4, s{S_T0}")
    g.e("v_mov_b32 v5, 1")
    g.e(f"global_atomic_add v4, v5, {sp(S_DBG)} sc1")
    g.e(f"s_mov_b64 exec, {sp(S_EX)}")

def fill_wait(g, vt=4):
    g.c("fill wait")
    L = g.nl("Lfw"); D = g.nl("Lfwd")
    g.e(f"s_cmp_lg_u32 s{S_WAVE}, 0")
    g.e(f"s_cbranch_scc1 {D}")
    g.e(f"s_mov_b32 s{S_CNT}, {MAXIT}")
    g.e(f"v_and_b32 v{vt}, 7, v1")
    g.e(f"v_lshlrev_b32 v{vt}, 2, v{vt}")
    g.lab(L)
    g.e(f"global_load_dword v{vt+1}, v{vt}, {sp(S_DBG)} sc1")
    g.e("s_waitcnt vmcnt(0)")
    g.e(f"v_cmp_ne_u32 vcc, 16, v{vt+1}")
    g.e(f"s_cbranch_vccz {D}")
    g.e(f"s_sub_u32 s{S_CNT}, s{S_CNT}, 1")
    g.e(f"s_cmp_eq_u32 s{S_CNT}, 0")
    g.e(f"s_cbranch_scc1 {D}")
    g.e("s_sleep 4")
    g.e(f"s_branch {L}")
    g.lab(D)
    g.e("s_barrier")

def poll(g, issue, regs, vt):
    L = g.nl("Lp"); D = g.nl("Lpd")
    g.e(f"s_mov_b32 s{S_CNT}, {MAXIT}")
    g.lab(L)
    issue()
    g.vw0()
    rs = list(regs)
    g.e(f"v_max_u32 v{vt}, v{rs[0]}, v{rs[1]}")
    rs = rs[2:]
    while len(rs) >= 2:
        g.e(f"v_max3_u32 v{vt}, v{vt}, v{rs[0]}, v{rs[1]}"); rs = rs[2:]
    if rs:
        g.e(f"v_max_u32 v{vt}, v{vt}, v{rs[0]}")
    g.e(f"v_cmp_eq_u32 vcc, -1, v{vt}")
    g.e(f"s_cbranch_vccz {D}")
    g.e(f"s_sub_u32 s{S_CNT}, s{S_CNT}, 1")
    g.e(f"s_cmp_eq_u32 s{S_CNT}, 0")
    g.e(f"s_cbranch_scc1 {D}")
    g.e("s_sleep 1")
    g.e(f"s_branch {L}")
    g.lab(D)

def canon(g, r):
    g.e(f"v_min_u32 v{r}, -2, v{r}")

def dot_pairs(g, A, B, xp0, xp1, acc, t0=4, t1=5):
    for i in range(4):
        g.e(f"v_perm_b32 v{t0}, v{B+i}, v{A+i}, s{S_SELLO}")
        g.e(f"v_perm_b32 v{t1}, v{B+i}, v{A+i}, s{S_SELHI}")
        g.e(f"v_dot2c_f32_bf16 v{acc+2*i}, v{t0}, v{xp0}")
        g.e(f"v_dot2c_f32_bf16 v{acc+2*i+1}, v{t1}, v{xp0}")
        g.e(f"v_dot2c_f32_bf16 v{acc+8+2*i}, v{t0}, v{xp1}")
        g.e(f"v_dot2c_f32_bf16 v{acc+8+2*i+1}, v{t1}, v{xp1}")

def prepair(g, A, B, t0=4):
    for i in range(4):
        g.e(f"v_perm_b32 v{t0}, v{B+i}, v{A+i}, s{S_SELLO}")
        g.e(f"v_perm_b32 v{B+i}, v{B+i}, v{A+i}, s{S_SELHI}")
        g.e(f"v_mov_b32 v{A+i}, v{t0}")

def dot_prepaired(g, A, B, xp0, xp1, acc):
    for i in range(4):
        g.e(f"v_dot2c_f32_bf16 v{acc+2*i}, v{A+i}, v{xp0}")
        g.e(f"v_dot2c_f32_bf16 v{acc+2*i+1}, v{B+i}, v{xp0}")
        g.e(f"v_dot2c_f32_bf16 v{acc+8+2*i}, v{A+i}, v{xp1}")
        g.e(f"v_dot2c_f32_bf16 v{acc+8+2*i+1}, v{B+i}, v{xp1}")

def zero(g, base, n):
    for i in range(n):
        g.e(f"v_mov_b32 v{base+i}, 0")

B_RED = 0
B_QBF = 0x8000
B_CTXC = 0x8200
B_CTXP = 0x8400
B_HBF = 0x8600
V_ACC = 16
V_XP = 32
V_WQ = 64
V_UK = 192
V_UV = 224

def roleB_ids(g):
    g.e(f"s_and_b32 s{S_H}, s{S_IDX}, 31")
    g.e(f"s_lshr_b32 s{S_J}, s{S_IDX}, 5")
    g.e("v_lshrrev_b32 v2, 4, v1")
    g.e("v_and_b32 v3, 15, v1")

def B1_loads(g, with_uv=True):
    g.c("B1 loads: x pairs, w_q, w_uk, w_uv")
    g.e(f"s_lshl_b32 s{S_T0}, s{S_WAVE}, 8")
    g.e("v_lshlrev_b32 v10, 6, v2")
    g.e(f"v_add_u32 v10, s{S_T0}, v10")
    for b in range(2):
        for q in range(4):
            g.e(f"global_load_dwordx4 {vr(V_XP+16*b+4*q,4)}, v10, {sp(S_X)} offset:{b*1024+q*16}"); g.vi("x")
    g.e(f"s_lshl_b32 s{S_T0}, s{S_WAVE}, 20")
    g.e(f"s_lshl_b32 s{S_T0+1}, s{S_H}, 8")
    g.e(f"s_add_u32 s{S_T0}, s{S_T0}, s{S_T0+1}")
    g.e("v_lshlrev_b32 v10, 18, v2")
    g.e("v_lshlrev_b32 v11, 4, v3")
    g.e("v_add_u32 v10, v10, v11")
    g.e(f"v_add_u32 v10, s{S_T0}, v10")
    for i in range(32):
        g.e(f"global_load_dwordx4 {vr(V_WQ+4*i,4)}, v10, {sp(S_WQ)}"); g.vi(f"wq{i}")
        if i < 31: g.e("v_add_u32 v10, 0x2000, v10")
    g.e(f"s_lshl_b32 s{S_T0}, s{S_J}, 20")
    g.e(f"s_lshl_b32 s{S_T0+2}, s{S_WAVE}, 18")
    g.e(f"s_add_u32 s{S_T0}, s{S_T0}, s{S_T0+2}")
    g.e(f"s_add_u32 s{S_T0}, s{S_T0}, s{S_T0+1}")
    g.e("v_lshlrev_b32 v10, 13, v3")
    g.e("v_lshlrev_b32 v11, 4, v2")
    g.e("v_add_u32 v10, v10, v11")
    g.e(f"v_add_u32 v10, s{S_T0}, v10")
    for tl in range(2):
        for ks in range(4):
            g.e(f"global_load_dwordx4 {vr(V_UK+16*tl+4*ks,4)}, v10, {sp(S_WUK)} offset:{ks*64}"); g.vi("uk")
        if tl == 0: g.e("v_add_u32 v10, 0x20000, v10")
    if with_uv:
        uv_loads(g)

def uv_loads(g):
    g.e(f"s_lshl_b32 s{S_T0}, s{S_J}, 20")
    g.e(f"s_lshl_b32 s{S_T0+2}, s{S_WAVE}, 18")
    g.e(f"s_add_u32 s{S_T0}, s{S_T0}, s{S_T0+2}")
    g.e(f"s_lshl_b32 s{S_T0+1}, s{S_H}, 8")
    g.e(f"s_add_u32 s{S_T0}, s{S_T0}, s{S_T0+1}")
    g.e("v_lshlrev_b32 v10, 16, v2")
    g.e("v_lshlrev_b32 v11, 4, v3")
    g.e("v_add_u32 v10, v10, v11")
    g.e(f"v_add_u32 v10, s{S_T0}, v10")
    for i in range(8):
        g.e(f"global_load_dwordx4 {vr(V_UV+4*i,4)}, v10, {sp(S_WUV)}"); g.vi("uv")
        if i < 7: g.e("v_add_u32 v10, 0x2000, v10")

def red16_to_bf16(g, dst):
    g.e("s_waitcnt lgkmcnt(0)")
    g.e("s_barrier")
    g.e("v_lshlrev_b32 v10, 2, v0")
    for p in range(16):
        g.e(f"ds_read_b32 v{64+p}, v10 offset:{B_RED+p*1024}") if False else None
    return

def red_write16(g):
    g.e(f"s_lshl_b32 s{S_T0}, s{S_WAVE}, 12")
    g.e("v_lshlrev_b32 v10, 10, v2")
    g.e("v_lshlrev_b32 v11, 5, v3")
    g.e("v_add_u32 v10, v10, v11")
    g.e(f"v_add_u32 v10, s{S_T0}, v10")
    g.nop(1)
    for b in range(2):
        for q in range(2):
            g.e(f"ds_write_b128 v10, {vr(V_ACC+8*b+4*q,4)} offset:{B_RED+b*512+q*16}")

def red_sum(g, npart, stride, dst, tmp):
    g.e("s_waitcnt lgkmcnt(0)")
    g.e("s_barrier")
    g.e("v_lshlrev_b32 v10, 2, v0")
    for p in range(npart):
        g.e(f"ds_read_b32 v{tmp+p}, v10 offset:{B_RED+p*stride}")
    g.e("s_waitcnt lgkmcnt(0)")
    n = npart
    while n > 1:
        for p in range(n // 2):
            g.e(f"v_add_f32 v{tmp+p}, v{tmp+p}, v{tmp+p+n//2}")
        n //= 2
    g.e(f"v_cvt_pk_bf16_f32 v{tmp}, v{tmp}, v{tmp}")
    g.e("v_lshlrev_b32 v10, 1, v0")
    g.e(f"ds_write_b16 v10, v{tmp} offset:{dst}")
    g.e("s_waitcnt lgkmcnt(0)")
    g.e("s_barrier")

def B1_compute(g):
    g.c("S1: q = x @ wq[:,h,:]")
    zero(g, V_ACC, 16)
    for t in range(16):
        g.vw(f"wq{2*t+1}")
        dot_pairs(g, V_WQ+8*t, V_WQ+8*t+4, V_XP+t, V_XP+16+t, V_ACC)
    g.nop(3)
    red_write16(g)
    red_sum(g, 16, 1024, B_QBF, V_XP)

def B1_s2(g):
    g.c("S2: qc = q @ wuk^T")
    g.e("v_and_b32 v10, 1, v1")
    g.e("v_lshlrev_b32 v10, 8, v10")
    g.e("v_lshlrev_b32 v11, 4, v2")
    g.e("v_add_u32 v10, v10, v11")
    for ks in range(4):
        g.e(f"ds_read_b128 {vr(V_XP+4*ks,4)}, v10 offset:{B_QBF+ks*64}")
    zero(g, V_ACC, 8)
    g.vw("uk")
    g.e("s_waitcnt lgkmcnt(0)")
    for ks in range(4):
        for tl in range(2):
            g.e(f"v_mfma_f32_16x16x32_bf16 {vr(V_ACC+4*tl,4)}, {vr(V_UK+16*tl+4*ks,4)}, {vr(V_XP+4*ks,4)}, {vr(V_ACC+4*tl,4)}")

def B1_store(g):
    g.e(f"s_lshl_b32 s{S_T0}, s{S_H}, 10")
    g.e(f"s_lshl_b32 s{S_T0+1}, s{S_J}, 8")
    g.e(f"s_add_u32 s{S_T0}, s{S_T0}, s{S_T0+1}")
    g.e(f"s_lshl_b32 s{S_T0+1}, s{S_WAVE}, 6")
    g.e(f"s_add_u32 s{S_T0}, s{S_T0}, s{S_T0+1}")
    g.e("v_lshlrev_b32 v10, 15, v3")
    g.e("v_lshlrev_b32 v11, 3, v2")
    g.e("v_add_u32 v10, v10, v11")
    g.e(f"v_add_u32 v10, s{S_T0}, v10")
    g.nop(8)
    for tl in range(2):
        g.e(f"v_cvt_pk_bf16_f32 v{4+2*tl}, v{V_ACC+4*tl}, v{V_ACC+4*tl+1}")
        g.e(f"v_cvt_pk_bf16_f32 v{5+2*tl}, v{V_ACC+4*tl+2}, v{V_ACC+4*tl+3}")
    for r in range(4, 8): canon(g, r)
    g.e("v_cmp_gt_u32 vcc, 2, v3")
    g.e(f"s_and_saveexec_b64 {sp(S_EX)}, vcc")
    for tl in range(2):
        g.e(f"global_store_dwordx2 v10, {vr(4+2*tl,2)}, {sp(S_WS)} offset:{QC_OFF+tl*32} sc1"); g.vi("st")
    g.e(f"s_mov_b64 exec, {sp(S_EX)}")

V_WO = 64
V_FG = 192
V_FU = 208
V_FD = 32
V_FX = 48

def B2_loads_wo(g):
    g.c("B2 loads: w_uv, w_o")
    uv_loads(g)
    g.e(f"s_lshl_b32 s{S_T0}, s{S_H}, 17")
    g.e(f"s_lshl_b32 s{S_T0+1}, s{S_WAVE}, 15")
    g.e(f"s_add_u32 s{S_T0}, s{S_T0}, s{S_T0+1}")
    g.e("v_lshlrev_b32 v10, 4, v1")
    g.e(f"v_add_u32 v10, s{S_T0}, v10")
    for i in range(32):
        g.e(f"global_load_dwordx4 {vr(V_WO+4*i,4)}, v10, {sp(S_WO)} offset:{(i%4)*1024}"); g.vi("wo")
        if i % 4 == 3 and i < 31: g.e("v_add_u32 v10, 0x1000, v10")

def B2_loads_ffn(g):
    g.c("B2 loads: ffn weights")
    skip = g.nl("Lnoffn")
    g.e(f"s_cmp_ge_u32 s{S_IDX}, 112")
    g.e(f"s_cbranch_scc1 {skip}")
    g.e("v_lshrrev_b32 v12, 1, v1")
    g.e("v_and_b32 v13, 1, v1")
    g.e(f"s_lshl_b32 s{S_T0}, s{S_WAVE}, 8")
    g.e("v_lshlrev_b32 v10, 3, v12")
    g.e(f"v_add_u32 v10, s{S_T0}, v10")
    for b in range(2):
        g.e(f"global_load_dwordx2 {vr(V_FX+2*b,2)}, v10, {sp(S_X)} offset:{b*1024}")
    g.e(f"s_mul_i32 s{S_T0}, s{S_WAVE}, {128*3584}")
    g.e(f"s_lshl_b32 s{S_T0+1}, s{S_IDX}, 5")
    g.e(f"s_add_u32 s{S_T0}, s{S_T0}, s{S_T0+1}")
    g.e(f"s_mov_b32 s{S_T0+1}, {4*3584}")
    g.e(f"v_mul_lo_u32 v10, v12, s{S_T0+1}")
    g.e("v_lshlrev_b32 v11, 4, v13")
    g.e("v_add_u32 v10, v10, v11")
    g.e(f"v_add_u32 v10, s{S_T0}, v10")
    for r in range(4):
        g.e(f"global_load_dwordx4 {vr(V_FG+4*r,4)}, v10, {sp(S_WG)}")
        g.e(f"global_load_dwordx4 {vr(V_FU+4*r,4)}, v10, {sp(S_WU)}")
        if r < 3: g.e("v_add_u32 v10, 3584, v10")
    g.e(f"s_lshl_b32 s{S_T0}, s{S_IDX}, 14")
    g.e(f"s_lshl_b32 s{S_T0+1}, s{S_WAVE}, 12")
    g.e(f"s_add_u32 s{S_T0}, s{S_T0}, s{S_T0+1}")
    g.e("v_lshlrev_b32 v10, 4, v1")
    g.e(f"v_add_u32 v10, s{S_T0}, v10")
    for r in range(4):
        g.e(f"global_load_dwordx4 {vr(V_FD+4*r,4)}, v10, {sp(S_WD)} offset:{r*1024}")
    g.lab(skip)

def red2_store(g, slot_sexpr_reg):
    g.e(f"s_lshl_b32 s{S_T0}, s{S_WAVE}, 12")
    g.e("v_lshlrev_b32 v10, 5, v1")
    g.e(f"v_add_u32 v10, s{S_T0}, v10")
    g.nop(2)
    for b in range(2):
        for q in range(2):
            g.e(f"ds_write_b128 v10, {vr(V_ACC+8*b+4*q,4)} offset:{B_RED+b*2048+q*16}")
    g.e("s_waitcnt lgkmcnt(0)")
    g.e("s_barrier")
    g.e("v_lshlrev_b32 v10, 4, v0")
    for w in range(4):
        g.e(f"ds_read_b128 {vr(V_ACC+4*w,4)}, v10 offset:{B_RED+w*4096}")
    g.e("s_waitcnt lgkmcnt(0)")
    for q in range(4):
        g.e(f"v_add_f32 v{V_ACC+q}, v{V_ACC+q}, v{V_ACC+4+q}")
        g.e(f"v_add_f32 v{V_ACC+8+q}, v{V_ACC+8+q}, v{V_ACC+12+q}")
    for q in range(4):
        g.e(f"v_add_f32 v{V_ACC+q}, v{V_ACC+q}, v{V_ACC+8+q}")
        canon(g, V_ACC+q)
    g.e(f"s_lshl_b32 s{S_T0}, s{slot_sexpr_reg}, 12")
    g.e(f"s_add_u32 s{S_T0}, s{S_T0}, {OUTP_OFF}")
    g.e(f"v_add_u32 v10, s{S_T0}, v10")
    g.e(f"global_store_dwordx4 v10, {vr(V_ACC,4)}, {sp(S_WS)} sc1"); g.vi("st")

def B2_ffn(g):
    g.c("FFN (idx<112)")
    skip = g.nl("Lnoffn2")
    g.e(f"s_cmp_ge_u32 s{S_IDX}, 112")
    g.e(f"s_cbranch_scc1 {skip}")
    zero(g, V_ACC, 16)
    for t in range(2):
        dot_pairs(g, V_FG+8*t, V_FG+8*t+4, V_FX+t, V_FX+2+t, V_ACC)
    zero(g, V_FG, 16)
    for t in range(2):
        dot_pairs(g, V_FU+8*t, V_FU+8*t+4, V_FX+t, V_FX+2+t, V_FG)
    g.nop(3)
    g.e(f"s_lshl_b32 s{S_T0}, s{S_WAVE}, 12")
    g.e("v_lshlrev_b32 v10, 7, v12")
    g.e("v_lshlrev_b32 v11, 5, v13")
    g.e("v_add_u32 v10, v10, v11")
    g.e(f"v_add_u32 v10, s{S_T0}, v10")
    for mat, base in ((0, V_ACC), (1, V_FG)):
        for b in range(2):
            for q in range(2):
                g.e(f"ds_write_b128 v10, {vr(base+8*b+4*q,4)} offset:{B_RED+mat*16384+b*64+q*16}")
    g.e("s_waitcnt lgkmcnt(0)")
    g.e("s_barrier")
    g.e("v_cmp_gt_u32 vcc, 32, v0")
    g.e(f"s_and_saveexec_b64 {sp(S_EX)}, vcc")
    sk2 = g.nl("Lffn32")
    g.e(f"s_cbranch_execz {sk2}")
    g.e("v_lshlrev_b32 v10, 2, v0")
    g.e("v_mov_b32 v4, 0")
    g.e("v_mov_b32 v5, 0")
    for p0 in range(0, 128, 8):
        for p in range(8):
            g.e(f"ds_read_b32 v{V_ACC+p}, v10 offset:{B_RED+(p0+p)*128}")
            g.e(f"ds_read_b32 v{V_ACC+8+p}, v10 offset:{B_RED+16384+(p0+p)*128}")
        g.e("s_waitcnt lgkmcnt(0)")
        for p in range(8):
            g.e(f"v_add_f32 v4, v4, v{V_ACC+p}")
            g.e(f"v_add_f32 v5, v5, v{V_ACC+8+p}")
    g.e("v_mul_f32 v6, v4, v4")
    g.e(f"s_mov_b32 s{S_T0}, 0x3d122279")
    g.e(f"v_mov_b32 v7, 0x3f4c422a")
    g.e(f"v_fma_f32 v6, v6, s{S_T0}, v7")
    g.e("v_mul_f32 v6, v6, v4")
    g.e("v_mul_f32 v6, 0x4038aa3b, v6")
    g.e("v_exp_f32 v6, v6")
    g.nop(1)
    g.e("v_add_f32 v6, 1.0, v6")
    g.e("v_rcp_f32 v6, v6")
    g.nop(1)
    g.e("v_sub_f32 v6, 1.0, v6")
    g.e("v_mul_f32 v6, v6, v4")
    g.e("v_mul_f32 v6, v6, v5")
    g.e("v_cvt_pk_bf16_f32 v6, v6, v6")
    g.e("v_lshlrev_b32 v10, 1, v0")
    g.e(f"ds_write_b16 v10, v6 offset:{B_HBF}")
    g.lab(sk2)
    g.e(f"s_mov_b64 exec, {sp(S_EX)}")
    g.e("s_waitcnt lgkmcnt(0)")
    g.e("s_barrier")
    g.e(f"s_lshl_b32 s{S_T0}, s{S_WAVE}, 3")
    g.e(f"v_mov_b32 v10, s{S_T0}")
    for b in range(2):
        g.e(f"ds_read_b64 {vr(V_FX+2*b,2)}, v10 offset:{B_HBF+b*32}")
    zero(g, V_ACC, 16)
    g.e("s_waitcnt lgkmcnt(0)")
    for t in range(2):
        dot_pairs(g, V_FD+8*t, V_FD+8*t+4, V_FX+t, V_FX+2+t, V_ACC)
    g.nop(3)
    g.e(f"s_add_u32 s{S_T0+4}, s{S_IDX}, 128")
    red2_store(g, S_T0+4)
    g.e("s_barrier")
    g.lab(skip)

def B2_prep(g):
    g.c("pre-pair uv, wo in the shadow")
    for t in range(4):
        prepair(g, V_UV+8*t, V_UV+8*t+4)
    for t in range(16):
        prepair(g, V_WO+8*t, V_WO+8*t+4)

def wave_reduce(g, op, r, t):
    for ctl in ("quad_perm:[1,0,3,2]", "quad_perm:[2,3,0,1]", "row_half_mirror", "row_mirror"):
        g.nop(2)
        g.e(f"{op}_dpp v{r}, v{r}, v{r} {ctl} row_mask:0xf bank_mask:0xf")
    for sw in ("v_permlane16_swap_b32", "v_permlane32_swap_b32"):
        g.e(f"v_mov_b32 v{t}, v{r}")
        g.nop(2)
        g.e(f"{sw} v{r}, v{t}")
        g.nop(2)
        g.e(f"{op} v{r}, v{r}, v{t}")

V_PL = 192
def B2_s4(g):
    g.c("S4: combine partials")
    g.e(f"s_lshr_b32 s{S_B}, s{S_WAVE}, 1")
    g.e(f"s_and_b32 s{S_S}, s{S_WAVE}, 1")
    g.e(f"s_lshl_b32 s{S_T0}, s{S_B}, 5")
    g.e(f"s_add_u32 s{S_T0}, s{S_T0}, s{S_H}")
    g.e(f"s_lshl_b32 s{S_T0+1}, s{S_T0}, 9")
    g.e("v_lshlrev_b32 v12, 3, v1")
    g.e(f"v_add_u32 v12, s{S_T0+1}, v12")
    g.e(f"s_lshl_b32 s{S_T0+1}, s{S_T0}, 16")
    g.e(f"s_lshl_b32 s{S_T0+2}, s{S_S}, 15")
    g.e(f"s_add_u32 s{S_T0+1}, s{S_T0+1}, s{S_T0+2}")
    g.e(f"s_lshl_b32 s{S_T0+2}, s{S_J}, 8")
    g.e(f"s_add_u32 s{S_T0+1}, s{S_T0+1}, s{S_T0+2}")
    g.e(f"s_add_u32 s{S_T0+1}, s{S_T0+1}, {PART_OFF}")
    g.e("v_lshlrev_b32 v13, 10, v2")
    g.e("v_lshlrev_b32 v11, 4, v3")
    g.e("v_add_u32 v13, v13, v11")
    g.e(f"v_add_u32 v13, s{S_T0+1}, v13")
    g.e(f"v_add_u32 v12, {STAT_OFF}, v12")
    def issue():
        g.e(f"global_load_dwordx2 v[48:49], v12, {sp(S_WS)} sc1")
    poll(g, issue, [48, 49], 4)
    stamp(g, 8)
    for i in range(8):
        g.e(f"global_load_dwordx4 {vr(V_PL+4*i,4)}, v13, {sp(S_WS)} sc1"); g.vi("pl")
        if i < 7: g.e("v_add_u32 v13, 0x1000, v13")
    g.e("v_mov_b32 v50, v48")
    wave_reduce(g, "v_max_f32", 50, 51)
    g.e("v_sub_f32 v50, v48, v50")
    g.e("v_exp_f32 v50, v50")
    g.nop(1)
    g.e("v_mul_f32 v52, v50, v49")
    wave_reduce(g, "v_add_f32", 52, 51)
    g.e("v_rcp_f32 v52, v52")
    g.nop(1)
    g.e("v_mul_f32 v50, v50, v52")
    g.e(f"s_lshl_b32 s{S_T0}, s{S_S}, 7")
    g.e("v_lshlrev_b32 v10, 2, v2")
    g.e(f"v_add_u32 v10, s{S_T0}, v10")
    for i in range(8):
        g.e(f"ds_bpermute_b32 v{52+i}, v10, v50 offset:{16*i}")
    zero(g, V_ACC, 8)
    g.e("s_waitcnt lgkmcnt(0)")
    g.vw0()
    for i in range(8):
        for q in range(4):
            r = V_PL+4*i+q
            g.e(f"v_lshlrev_b32 v4, 16, v{r}")
            g.e(f"v_and_b32 v5, 0xffff0000, v{r}")
            g.e(f"v_fmac_f32 v{V_ACC+2*q}, v{52+i}, v4")
            g.e(f"v_fmac_f32 v{V_ACC+2*q+1}, v{52+i}, v5")
    g.e(f"s_lshl_b32 s{S_T0}, s{S_WAVE}, 11")
    g.e("v_lshlrev_b32 v10, 9, v2")
    g.e("v_lshlrev_b32 v11, 5, v3")
    g.e("v_add_u32 v10, v10, v11")
    g.e(f"v_add_u32 v10, s{S_T0}, v10")
    for q in range(2):
        g.e(f"ds_write_b128 v10, {vr(V_ACC+4*q,4)} offset:{B_RED+q*16}")
    g.e("s_waitcnt lgkmcnt(0)")
    g.e("s_barrier")
    g.e("v_lshrrev_b32 v10, 7, v0")
    g.e("v_lshlrev_b32 v10, 12, v10")
    g.e("v_and_b32 v11, 127, v0")
    g.e("v_lshlrev_b32 v11, 2, v11")
    g.e("v_add_u32 v10, v10, v11")
    for p in range(8):
        g.e(f"ds_read_b32 v{48+p}, v10 offset:{B_RED+p*512}")
    g.e("s_waitcnt lgkmcnt(0)")
    for n in (4, 2, 1):
        for p in range(n):
            g.e(f"v_add_f32 v{48+p}, v{48+p}, v{48+p+n}")
    g.e("v_cvt_pk_bf16_f32 v48, v48, v48")
    g.e("v_lshlrev_b32 v10, 1, v0")
    g.e(f"ds_write_b16 v10, v48 offset:{B_CTXC}")
    g.e("s_waitcnt lgkmcnt(0)")
    g.e("s_barrier")
    g.c("uv")
    g.e(f"s_lshl_b32 s{S_T0}, s{S_WAVE}, 6")
    g.e("v_lshlrev_b32 v10, 4, v2")
    g.e(f"v_add_u32 v10, s{S_T0}, v10")
    for b in range(2):
        g.e(f"ds_read_b128 {vr(48+4*b,4)}, v10 offset:{B_CTXC+b*256}")
    zero(g, V_ACC, 16)
    g.e("s_waitcnt lgkmcnt(0)")
    for t in range(4):
        dot_prepaired(g, V_UV+8*t, V_UV+8*t+4, 48+t, 52+t, V_ACC)
    g.nop(3)
    red_write16(g)
    red_sum(g, 16, 1024, B_CTXP, 192)
    g.c("o-proj")
    g.e(f"s_lshl_b32 s{S_T0}, s{S_WAVE}, 6")
    g.e(f"v_mov_b32 v10, s{S_T0}")
    for b in range(2):
        for q in range(4):
            g.e(f"ds_read_b128 {vr(192+16*b+4*q,4)}, v10 offset:{B_CTXP+b*256+q*16}")
    zero(g, V_ACC, 16)
    g.e("s_waitcnt lgkmcnt(0)")
    for t in range(16):
        dot_prepaired(g, V_WO+8*t, V_WO+8*t+4, 192+t, 208+t, V_ACC)
    g.nop(3)
    red2_store(g, S_IDX)

A_QC = 131072
A_PF = 0
A_MX = 8192
A_LS = 8192 + 512
A_OUT = 0

def swz(r):
    return ((r & 3) << 2) | ((r >> 2) & 3)

def roleA_ids(g):
    g.e(f"s_lshr_b32 s{S_B}, s{S_IDX}, 6")
    g.e(f"s_and_b32 s{S_S}, s{S_IDX}, 63")

def A_dma(g):
    g.c("c_kv tile DMA")
    g.e(f"s_lshl_b32 s{S_T0}, s{S_B}, 23")
    g.e(f"s_lshl_b32 s{S_T0+1}, s{S_S}, 17")
    g.e(f"s_add_u32 s{S_T0}, s{S_T0}, s{S_T0+1}")
    g.e(f"s_lshl_b32 s{S_T0+1}, s{S_WAVE}, 15")
    g.e(f"s_add_u32 s{S_T0}, s{S_T0}, s{S_T0+1}")
    g.e(f"s_add_u32 s54, s{S_CKV}, s{S_T0}")
    g.e(f"s_addc_u32 s55, s{S_CKV+1}, 0")
    g.e("s_add_u32 s56, s54, 16384")
    g.e("s_addc_u32 s57, s55, 0")
    for i in range(16):
        g.e(f"v_xor_b32 v{16+i}, {swz(i)}, v1")
        g.e(f"v_lshlrev_b32 v{16+i}, 4, v{16+i}")
        if i & 12:
            g.e(f"v_add_u32 v{16+i}, {(i&12)*1024}, v{16+i}")
    g.e(f"s_lshl_b32 s{S_T0}, s{S_WAVE}, 15")
    for q in range(2):
        for i0 in range(0, 16, 4):
            g.e(f"s_add_u32 s{S_T0+1}, s{S_T0}, {q*16384+i0*1024}")
            g.e(f"s_mov_b32 m0, s{S_T0+1}")
            g.e("s_nop 0")
            for i in range(i0, i0+4):
                g.e(f"global_load_lds_dwordx4 v{16+i}, s[{54+2*q}:{55+2*q}] offset:{(i&3)*1024}"); g.vi("dma")

V_QL = 64
def A_qc(g):
    g.c("QC load + stage to LDS")
    g.e(f"s_lshl_b32 s{S_T0}, s{S_B}, 15")
    g.e("v_lshlrev_b32 v12, 4, v0")
    g.e(f"v_add_u32 v12, s{S_T0}, v12")
    def issue():
        g.e("v_mov_b32 v10, v12")
        for i in range(8):
            g.e(f"global_load_dwordx4 {vr(V_QL+4*i,4)}, v10, {sp(S_WS)} sc1")
            if i < 7: g.e("v_add_u32 v10, 0x1000, v10")
    poll(g, issue, list(range(V_QL, V_QL+32)), 4)
    stamp(g, 4)
    g.e(f"s_lshl_b32 s{S_T0}, s{S_WAVE}, 2")
    g.e(f"s_lshl_b32 s{S_T0+1}, s{S_WAVE}, 10")
    g.e(f"s_add_u32 s{S_T0+1}, s{S_T0+1}, {A_QC}")
    for i in range(4):
        g.e(f"v_xor_b32 v{4+i}, {i}, v1")
        g.e(f"v_xor_b32 v{4+i}, s{S_T0}, v{4+i}")
        g.e(f"v_lshlrev_b32 v{4+i}, 4, v{4+i}")
        g.e(f"v_add_u32 v{4+i}, s{S_T0+1}, v{4+i}")
    for i in range(8):
        g.e(f"ds_write_b128 v{4+(i&3)}, {vr(V_QL+4*i,4)} offset:{i*4096}")
    g.e("s_waitcnt lgkmcnt(0)")
    g.e("s_barrier")

V_SA = 16
V_SB = 24
V_S = 32
V_BUF = 96
def A_qk(g):
    g.c("QK^T")
    g.e("v_and_b32 v4, 31, v1")
    g.e("v_lshrrev_b32 v5, 5, v1")
    g.e("v_and_b32 v6, 3, v1")
    g.e("v_lshlrev_b32 v6, 2, v6")
    g.e("v_lshrrev_b32 v7, 2, v1")
    g.e("v_and_b32 v7, 3, v7")
    g.e("v_or_b32 v6, v6, v7")
    g.e("v_lshlrev_b32 v4, 10, v4")
    g.e(f"s_lshl_b32 s{S_T0}, s{S_WAVE}, 15")
    for ep in range(8):
        g.e(f"v_add_u32 v7, {2*ep}, v5")
        g.e("v_xor_b32 v7, v7, v6")
        g.e("v_lshlrev_b32 v7, 4, v7")
        g.e("v_add_u32 v7, v7, v4")
        g.e(f"v_add_u32 v{V_SA+ep}, s{S_T0}, v7")
        g.e(f"v_add_u32 v{V_SB+ep}, {A_QC}, v7")
    zero(g, V_S, 16)
    def rd(s):
        a, ep = s // 8, s % 8
        bb = V_BUF + 8*(s % 4)
        g.e(f"ds_read_b128 {vr(bb,4)}, v{V_SA+ep} offset:{a*256}")
        g.e(f"ds_read_b128 {vr(bb+4,4)}, v{V_SB+ep} offset:{a*256}")
    for s in range(4): rd(s)
    for s in range(32):
        out = min(3, 31 - s) * 2
        g.e(f"s_waitcnt lgkmcnt({out})")
        bb = V_BUF + 8*(s % 4)
        g.e(f"v_mfma_f32_32x32x16_bf16 {vr(V_S,16)}, {vr(bb,4)}, {vr(bb+4,4)}, {vr(V_S,16)}")
        if s + 4 < 32: rd(s + 4)
    g.e("s_barrier")
    g.nop(12)

V_PFR = 128
def A_softmax(g):
    g.c("softmax")
    g.e(f"v_max3_f32 v4, v{V_S}, v{V_S+1}, v{V_S+2}")
    for i in range(3, 15, 2):
        g.e(f"v_max3_f32 v4, v4, v{V_S+i}, v{V_S+i+1}")
    g.e(f"v_max_f32 v4, v4, v{V_S+15}")
    g.e("v_mov_b32 v5, v4")
    g.nop(2)
    g.e("v_permlane32_swap_b32 v4, v5")
    g.nop(2)
    g.e("v_max_f32 v4, v4, v5")
    g.e("v_and_b32 v6, 31, v1")
    g.e("v_lshlrev_b32 v6, 2, v6")
    g.e(f"v_add_u32 v6, {A_QC}, v6")
    g.e(f"s_lshl_b32 s{S_T0}, s{S_WAVE}, 7")
    g.e(f"v_add_u32 v7, s{S_T0}, v6")
    g.e(f"ds_write_b32 v7, v4 offset:{A_MX}")
    g.e("s_waitcnt lgkmcnt(0)")
    g.e("s_barrier")
    for w in range(4):
        g.e(f"ds_read_b32 v{8+w}, v6 offset:{A_MX+w*128}")
    g.e("s_waitcnt lgkmcnt(0)")
    g.e("v_max3_f32 v8, v8, v9, v10")
    g.e("v_max_f32 v8, v8, v11")
    g.e(f"s_mov_b32 s{S_T0+1}, 0x3e0293ee")
    g.e(f"v_mul_f32 v8, s{S_T0+1}, v8")
    for i in range(16):
        g.e(f"v_fma_f32 v{V_S+i}, v{V_S+i}, s{S_T0+1}, -v8")
    for i in range(16):
        g.e(f"v_exp_f32 v{V_S+i}, v{V_S+i}")
    g.nop(1)
    g.e(f"v_add_f32 v9, v{V_S}, v{V_S+1}")
    for i in range(2, 16):
        g.e(f"v_add_f32 v9, v9, v{V_S+i}")
    g.e("v_mov_b32 v10, v9")
    g.nop(2)
    g.e("v_permlane32_swap_b32 v9, v10")
    g.nop(2)
    g.e("v_add_f32 v9, v9, v10")
    g.e(f"ds_write_b32 v7, v9 offset:{A_LS}")
    for t in range(2):
        for q in range(4):
            g.e(f"v_cvt_pk_bf16_f32 v{12+q}, v{V_S+8*t+2*q}, v{V_S+8*t+2*q+1}") if t == 0 else g.e(f"v_cvt_pk_bf16_f32 v{V_S+q}, v{V_S+8*t+2*q}, v{V_S+8*t+2*q+1}")
    g.e(f"s_lshl_b32 s{S_T0}, s{S_WAVE}, 11")
    g.e("v_lshlrev_b32 v11, 4, v1")
    g.e(f"v_add_u32 v11, {A_QC}, v11")
    g.e(f"v_add_u32 v7, s{S_T0}, v11")
    g.e(f"ds_write_b128 v7, v[12:15] offset:{A_PF}")
    g.e(f"ds_write_b128 v7, {vr(V_S,4)} offset:{A_PF+1024}")
    g.e("s_waitcnt lgkmcnt(0)")
    g.e("s_barrier")
    for ks in range(8):
        g.e(f"ds_read_b128 {vr(V_PFR+4*ks,4)}, v11 offset:{A_PF+ks*1024}")
    for w in range(4):
        g.e(f"ds_read_b32 v{12+w}, v6 offset:{A_LS+w*128}")
    g.e("s_waitcnt lgkmcnt(0)")
    g.e("v_add_f32 v12, v12, v13")
    g.e("v_add_f32 v14, v14, v15")
    g.e("v_add_f32 v9, v12, v14")
    g.e("v_mov_b32 v2, v8")
    g.e("v_mov_b32 v3, v9")

V_PA = 16
V_O = 192
V_PB = 96
def A_pv(g):
    g.c("PV")
    g.e("v_lshrrev_b32 v4, 2, v1")
    g.e("v_and_b32 v4, 3, v4")
    g.e("v_lshrrev_b32 v5, 4, v1")
    g.e("v_and_b32 v5, 1, v5")
    g.e("v_lshlrev_b32 v5, 1, v5")
    g.e("v_lshrrev_b32 v6, 1, v1")
    g.e("v_and_b32 v6, 1, v6")
    g.e("v_or_b32 v5, v5, v6")
    g.e("v_lshrrev_b32 v6, 5, v1")
    g.e("v_and_b32 v7, 1, v1")
    g.e("v_lshlrev_b32 v7, 3, v7")
    g.e("v_lshlrev_b32 v8, 2, v6")
    g.e("v_add_u32 v8, v8, v4")
    g.e("v_lshlrev_b32 v8, 10, v8")
    g.e("v_add_u32 v8, v8, v7")
    g.e(f"s_lshl_b32 s{S_T0}, s{S_WAVE}, 8")
    g.e(f"v_add_u32 v8, s{S_T0}, v8")
    for ctl in range(4):
        for u in range(2):
            g.e(f"v_xor_b32 v9, {ctl}, v4")
            g.e("v_lshlrev_b32 v9, 2, v9")
            g.e(f"v_add_u32 v10, {2*u}, v6")
            g.e("v_xor_b32 v10, v10, v5")
            g.e("v_or_b32 v9, v9, v10")
            g.e("v_lshlrev_b32 v9, 4, v9")
            g.e("v_add_u32 v9, v9, v8")
            g.e(f"v_add_u32 v{V_PA+2*ctl+u}, {u*8192}, v9")
            g.e(f"v_add_u32 v{V_PA+8+2*ctl+u}, {u*8192+65536}, v9")
    zero(g, V_O, 64)
    steps = [(ks, ctl) for ks in range(8) for ctl in range(4)]
    def rd(n):
        ks, ctl = steps[n]
        bb = V_PB + 4*(n % 4)
        hi = 8 if ks >= 4 else 0
        for u in range(2):
            g.e(f"ds_read_b64_tr_b16 {vr(bb+2*u,2)}, v{V_PA+hi+2*ctl+u} offset:{(ks%4)*16384}")
    for n in range(4): rd(n)
    for n in range(32):
        ks, ctl = steps[n]
        out = min(3, 31 - n) * 2
        g.e(f"s_waitcnt lgkmcnt({out})")
        bb = V_PB + 4*(n % 4)
        g.e(f"v_mfma_f32_32x32x16_bf16 {vr(V_O+16*ctl,16)}, {vr(bb,4)}, {vr(V_PFR+4*ks,4)}, {vr(V_O+16*ctl,16)}")
        if n + 4 < 32: rd(n + 4)
    g.e("s_barrier")
    g.nop(12)
    g.c("transpose via LDS and store")
    g.e("v_and_b32 v4, 31, v1")
    g.e(f"v_mov_b32 v5, 1040")
    g.e("v_mul_lo_u32 v4, v4, v5")
    g.e("v_lshlrev_b32 v5, 3, v6")
    g.e("v_add_u32 v4, v4, v5")
    g.e(f"s_lshl_b32 s{S_T0}, s{S_WAVE}, 8")
    g.e(f"v_add_u32 v4, s{S_T0}, v4")
    for ctl in range(4):
        for gg in range(4):
            r = V_O + 16*ctl + 4*gg
            t = 8 + 2*(gg & 1)
            g.e(f"v_cvt_pk_bf16_f32 v{t}, v{r}, v{r+1}")
            g.e(f"v_cvt_pk_bf16_f32 v{t+1}, v{r+2}, v{r+3}")
            g.e(f"ds_write_b64 v4, {vr(t,2)} offset:{A_OUT+ctl*64+gg*16}")
    g.e("s_waitcnt lgkmcnt(0)")
    g.e("s_barrier")
    g.e(f"s_mul_i32 s{S_T0}, s{S_WAVE}, {8*1040}")
    g.e("v_lshlrev_b32 v4, 4, v1")
    g.e(f"v_add_u32 v5, s{S_T0}, v4")
    for r in range(8):
        g.e(f"ds_read_b128 {vr(64+4*r,4)}, v5 offset:{A_OUT+r*1040}")
    g.e(f"s_lshl_b32 s{S_T0}, s{S_B}, 21")
    g.e(f"s_lshl_b32 s{S_T0+1}, s{S_WAVE}, 19")
    g.e(f"s_add_u32 s{S_T0}, s{S_T0}, s{S_T0+1}")
    g.e(f"s_lshl_b32 s{S_T0+1}, s{S_S}, 10")
    g.e(f"s_add_u32 s{S_T0}, s{S_T0}, s{S_T0+1}")
    g.e(f"s_add_u32 s{S_T0}, s{S_T0}, {PART_OFF}")
    g.e(f"v_add_u32 v4, s{S_T0}, v4")
    for r in range(8):
        g.e(f"s_waitcnt lgkmcnt({7-r})")
        for q in range(4): canon(g, 64+4*r+q)
        g.e(f"global_store_dwordx4 v4, {vr(64+4*r,4)}, {sp(S_WS)} sc1"); g.vi("st")
        if r < 7: g.e("v_add_u32 v4, 0x10000, v4")
    g.vw0()
    g.e("s_barrier")
    sk = g.nl("Lst")
    g.e(f"s_cmp_lg_u32 s{S_WAVE}, 0")
    g.e(f"s_cbranch_scc1 {sk}")
    g.e(f"s_lshl_b32 s{S_T0}, s{S_B}, 14")
    g.e(f"s_lshl_b32 s{S_T0+1}, s{S_S}, 3")
    g.e(f"s_add_u32 s{S_T0}, s{S_T0}, s{S_T0+1}")
    g.e(f"s_add_u32 s{S_T0}, s{S_T0}, {STAT_OFF}")
    g.e("v_and_b32 v10, 31, v1")
    g.e("v_lshlrev_b32 v10, 9, v10")
    g.e(f"v_add_u32 v10, s{S_T0}, v10")
    g.e("v_cmp_gt_u32 vcc, 32, v1")
    g.e(f"s_and_saveexec_b64 {sp(S_EX)}, vcc")
    g.e(f"global_store_dwordx2 v10, v[2:3], {sp(S_WS)} sc1")
    g.e(f"s_mov_b64 exec, {sp(S_EX)}")
    g.lab(sk)

F_RED = 0
def F_gate_loads(g):
    g.e(f"s_lshr_b32 s{S_T0}, s{S_IDX}, 4")
    g.e(f"s_lshl_b32 s{S_T0}, s{S_T0}, 10")
    g.e("v_lshlrev_b32 v10, 4, v1")
    g.e(f"v_add_u32 v11, s{S_T0}, v10")
    g.e(f"global_load_dwordx4 v[240:243], v11, {sp(S_X)}"); g.vi("gx")
    g.e(f"global_load_dwordx4 v[244:247], v10, {sp(S_GW)}"); g.vi("gx")

def F_gate(g):
    g.vw("gx")
    g.e("v_mov_b32 v248, 0")
    for q in range(4):
        g.e(f"v_dot2c_f32_bf16 v248, v{240+q}, v{244+q}")
    g.nop(3)
    wave_reduce(g, "v_add_f32", 248, 249)
    g.e("v_mul_f32 v248, 0xbfb8aa3b, v248")
    g.e("v_exp_f32 v248, v248")
    g.nop(1)
    g.e("v_add_f32 v248, 1.0, v248")
    g.e("v_rcp_f32 v248, v248")
    g.nop(2)
    g.e("v_readfirstlane_b32 s60, v248")

def F_final(g):
    g.c("final reduce (idx<32)")
    g.e(f"s_lshl_b32 s{S_T0}, s{S_WAVE}, 15")
    g.e(f"s_lshl_b32 s{S_T0+1}, s{S_IDX}, 7")
    g.e(f"s_add_u32 s{S_T0}, s{S_T0}, s{S_T0+1}")
    g.e(f"s_add_u32 s{S_T0}, s{S_T0}, {OUTP_OFF}")
    g.e("v_lshrrev_b32 v12, 3, v1")
    g.e("v_lshlrev_b32 v12, 12, v12")
    g.e("v_and_b32 v13, 7, v1")
    g.e("v_lshlrev_b32 v13, 4, v13")
    g.e("v_add_u32 v12, v12, v13")
    g.e(f"v_add_u32 v12, s{S_T0}, v12")
    zero(g, 92, 4)
    def issue():
        g.e("v_mov_b32 v10, v12")
        for r in range(7):
            g.e(f"global_load_dwordx4 {vr(64+4*r,4)}, v10, {sp(S_WS)} sc1")
            g.e("v_add_u32 v10, 0x20000, v10")
        sk = g.nl("Lf7")
        g.e(f"s_cmp_ge_u32 s{S_WAVE}, 2")
        g.e(f"s_cbranch_scc1 {sk}")
        g.e(f"global_load_dwordx4 {vr(92,4)}, v10, {sp(S_WS)} sc1")
        g.lab(sk)
    poll(g, issue, list(range(64, 96)), 4)
    for q in range(4):
        g.e(f"v_add_f32 v{64+q}, v{64+q}, v{68+q}")
        g.e(f"v_add_f32 v{72+q}, v{72+q}, v{76+q}")
        g.e(f"v_add_f32 v{80+q}, v{80+q}, v{84+q}")
        g.e(f"v_add_f32 v{88+q}, v{88+q}, v{92+q}")
    for q in range(4):
        g.e(f"v_add_f32 v{64+q}, v{64+q}, v{72+q}")
        g.e(f"v_add_f32 v{68+q}, v{80+q}, v{88+q}")
    g.e(f"s_lshl_b32 s{S_T0}, s{S_WAVE}, 10")
    g.e("v_lshrrev_b32 v10, 3, v1")
    g.e("v_lshlrev_b32 v10, 7, v10")
    g.e("v_add_u32 v10, v10, v13")
    g.e(f"v_add_u32 v10, s{S_T0}, v10")
    g.e(f"ds_write_b128 v10, v[64:67] offset:{F_RED}")
    g.e(f"ds_write_b128 v10, v[68:71] offset:{F_RED+4096}")
    g.e("s_waitcnt lgkmcnt(0)")
    g.e("s_barrier")
    sk = g.nl("Lfin")
    g.e(f"s_cmp_lg_u32 s{S_WAVE}, 0")
    g.e(f"s_cbranch_scc1 {sk}")
    g.e("v_lshrrev_b32 v10, 5, v1")
    g.e("v_lshlrev_b32 v10, 12, v10")
    g.e("v_and_b32 v11, 31, v1")
    g.e("v_lshlrev_b32 v11, 2, v11")
    g.e("v_add_u32 v10, v10, v11")
    for p in range(32):
        g.e(f"ds_read_b32 v{64+p}, v10 offset:{F_RED+p*128}")
    g.e("s_waitcnt lgkmcnt(0)")
    for n in (16, 8, 4, 2, 1):
        for p in range(n):
            g.e(f"v_add_f32 v{64+p}, v{64+p}, v{64+p+n}")
    g.e("v_mov_b32 v248, s60")
    g.e("v_sub_f32 v5, 1.0, v248")
    g.e("v_cmp_gt_u32 vcc, 32, v1")
    g.nop(2)
    g.e("v_cndmask_b32 v5, v5, v248, vcc")
    g.e("v_mul_f32 v64, v64, v5")
    g.e("v_mov_b32 v65, v64")
    g.nop(2)
    g.e("v_permlane32_swap_b32 v64, v65")
    g.nop(2)
    g.e("v_add_f32 v64, v64, v65")
    g.nop(2)
    g.e("v_mov_b32_dpp v65, v64 quad_perm:[1,0,3,2] row_mask:0xf bank_mask:0xf")
    g.e("v_cvt_pk_bf16_f32 v64, v64, v65")
    g.e(f"s_lshl_b32 s{S_T0}, s{S_IDX}, 6")
    g.e("v_lshrrev_b32 v10, 1, v1")
    g.e("v_lshlrev_b32 v10, 2, v10")
    g.e(f"v_add_u32 v10, s{S_T0}, v10")
    g.e("v_and_b32 v11, 33, v1")
    g.e("v_cmp_eq_u32 vcc, 0, v11")
    g.e(f"s_and_saveexec_b64 {sp(S_EX)}, vcc")
    g.e(f"global_store_dword v10, v64, {sp(S_OUT)}")
    g.e(f"s_mov_b64 exec, {sp(S_EX)}")
    g.lab(sk)

def header(launches):
    s = open("cdna_kernels/" + KNAME[:-7] + ".s.ref").read().split("\n")
    hdr = [l for l in s if l.startswith(";") and "@launch" not in l]
    return "\n".join(hdr) + "\n" + "\n".join(launches) + "\n" + '.amdgcn_target "amdgcn-amd-amdhsa--gfx950"\n.text\n'

def kernel_open(name):
    return f".globl {name}\n.p2align 8\n.type {name},@function\n{name}:\n"

def kd(name, nv=256):
    return f""".amdhsa_kernel {name}
  .amdhsa_next_free_vgpr {nv}
  .amdhsa_next_free_sgpr 102
  .amdhsa_accum_offset {nv}
  .amdhsa_group_segment_fixed_size 0
  .amdhsa_kernarg_size 112
  .amdhsa_user_sgpr_count 2
  .amdhsa_user_sgpr_kernarg_segment_ptr 1
  .amdhsa_system_sgpr_workgroup_id_x 1
.end_amdhsa_kernel
"""

def svc_fill(g):
    sk = g.nl("Lsvc")
    g.e(f"s_cmp_lg_u32 s{S_WAVE}, 3")
    g.e(f"s_cbranch_scc1 {sk}")
    fill(g)
    g.lab(sk)

def build_multi():
    ks = []
    g = G(); prologue(g, 128, "k0_end"); g.e(f"s_mov_b32 s{S_IDX}, s2"); svc_fill(g); g.lab("k0_end"); g.e("s_endpgm"); ks.append(("k0_fill_kernel", 128, g))
    g = G(); prologue(g, 128, "k1_end"); g.e(f"s_mov_b32 s{S_IDX}, s2"); roleB_ids(g); B1_loads(g, with_uv=False); B1_compute(g); B1_s2(g); B1_store(g)
    g.lab("k1_end"); g.e("s_endpgm"); ks.append(("k1_b1_kernel", 128, g))
    g = G(); prologue(g, 128, "k2_end"); g.e(f"s_mov_b32 s{S_IDX}, s2"); roleA_ids(g); A_dma(g); A_qc(g); A_qk(g); A_softmax(g); A_pv(g)
    g.lab("k2_end"); g.e("s_endpgm"); ks.append(("k2_attn_kernel", 128, g))
    g = G(); prologue(g, 128, "k3_end"); g.e(f"s_mov_b32 s{S_IDX}, s2"); roleB_ids(g); B2_loads_ffn(g); B2_loads_wo(g); g.vw0(); B2_ffn(g); B2_prep(g); B2_s4(g)
    g.lab("k3_end"); g.e("s_endpgm"); ks.append(("k3_b2_kernel", 128, g))
    g = G(); prologue(g, 32, "k4_end"); g.e(f"s_mov_b32 s{S_IDX}, s2"); F_gate_loads(g); F_gate(g); F_final(g)
    g.lab("k4_end"); g.e("s_endpgm"); ks.append((KNAME, 32, g))
    launches = [f"; @launch kernel={n} grid=({w},1,1) block=(256,1,1) lds={LDS_BYTES}" for n, w, _ in ks]
    s = header(launches)
    for n, w, g in ks:
        s += kernel_open(n) + "\n".join(g.L) + "\n"
    s += '.section .rodata,"a"\n.p2align 6\n'
    for n, w, g in ks:
        s += kd(n) + ".p2align 6\n"
    return s

def build_fused():
    g = G()
    prologue(g, 256, "k_end")
    g.e("s_cmp_ge_u32 s2, 128")
    g.e("s_cbranch_scc1 role_a")
    g.e(f"s_mov_b32 s{S_IDX}, s2")
    stamp(g, 0)
    roleB_ids(g)
    B1_loads(g, with_uv=False)
    stamp(g, 1)
    B1_compute(g)
    stamp(g, 2)
    B1_s2(g)
    stamp(g, 3)
    fill_wait(g)
    stamp(g, 4)
    B1_store(g)
    B2_loads_ffn(g)
    B2_loads_wo(g)
    g.vw0()
    stamp(g, 5)
    B2_ffn(g)
    stamp(g, 6)
    B2_prep(g)
    stamp(g, 7)
    B2_s4(g)
    stamp(g, 9)
    stamp_flush(g)
    g.e("s_endpgm")
    g.lab("role_a")
    g.vm = []
    g.e(f"s_sub_u32 s{S_IDX}, s2, 128")
    stamp(g, 0)
    roleA_ids(g)
    svc_fill(g)
    F_gate_loads(g)
    F_gate(g)
    stamp(g, 1)
    fill_wait(g)
    stamp(g, 2)
    A_dma(g)
    stamp(g, 3)
    A_qc(g)
    stamp(g, 5)
    A_qk(g)
    stamp(g, 6)
    A_softmax(g)
    stamp(g, 7)
    A_pv(g)
    stamp(g, 8)
    g.e(f"s_cmp_ge_u32 s{S_IDX}, 32")
    g.e("s_cbranch_scc1 k_end2")
    g.e("s_barrier")
    F_final(g)
    stamp(g, 9)
    g.lab("k_end2")
    stamp_flush(g)
    g.lab("k_end")
    g.e("s_endpgm")
    launches = [f"; @launch grid=(256,1,1) block=(256,1,1) lds={LDS_BYTES}"]
    s = header(launches)
    s += kernel_open(KNAME) + "\n".join(g.L) + "\n"
    s += '.section .rodata,"a"\n.p2align 6\n' + kd(KNAME)
    return s

if __name__ == "__main__":
    mode = sys.argv[1]
    out = sys.argv[2]
    STAMPS = len(sys.argv) > 3
    s = build_multi() if mode == "multi" else build_fused()
    open(out, "w").write(s)
```

```python
import sys

KNAME = "gated_mix__compressed_kv_cla__geglu_ffn__decode_kernel"

QC_OFF   = 0
STAT_OFF = 0x10000
CP_OFF   = 0x18000
QP_OFF   = 0x540000
OUTP_OFF = 0x40000
PART_OFF = 0x140000
LDS_BYTES = 163840
MAXIT = 200000

class G:
    N = [0]
    def __init__(self):
        self.L = []
        self.vm = []
    def e(self, s):
        self.L.append("  " + s)
    def c(self, s):
        self.L.append("  ; " + s)
    def lab(self, s):
        self.L.append(s + ":")
    def nl(self, p="L"):
        G.N[0] += 1
        return f"{p}_{G.N[0]}"
    def vi(self, tag):
        self.vm.append(tag)
        assert len(self.vm) <= 63, "too many outstanding vmem"
    def vw(self, tag):
        if tag not in self.vm: return
        idx = max(i for i, t in enumerate(self.vm) if t == tag)
        n = len(self.vm) - 1 - idx
        self.e(f"s_waitcnt vmcnt({n})")
        self.vm = self.vm[idx + 1:]
    def vw0(self):
        self.e("s_waitcnt vmcnt(0)")
        self.vm = []
    def nop(self, n):
        self.e(f"s_nop {n-1}")

TS_OFF = 0x600000
STAMPS = False
def stamp(g, i):
    if STAMPS:
        g.e(f"s_memrealtime s[{64+2*i}:{65+2*i}]")
def stamp_flush(g, n=16):
    if not STAMPS: return
    lab = g.nl("Lts")
    g.e(f"s_cmp_lg_u32 s{S_WAVE}, 0")
    g.e(f"s_cbranch_scc1 {lab}")
    g.e("s_waitcnt lgkmcnt(0)")
    g.e("s_lshl_b32 s40, s2, 6")
    g.e(f"s_add_u32 s40, s40, {TS_OFF}")
    g.e("v_mov_b32 v5, s40")
    g.e("v_cmp_eq_u32 vcc, 0, v0")
    g.e("s_and_saveexec_b64 s[48:49], vcc")
    for i in range(n):
        g.e(f"v_mov_b32 v4, s{64+2*i}")
        g.e(f"global_store_dword v5, v4, s[30:31] offset:{4*i}")
    g.e("s_mov_b64 exec, s[48:49]")
    g.lab(lab)

def vr(a, n):
    return f"v[{a}:{a+n-1}]" if n > 1 else f"v{a}"

S_X, S_CKV, S_WQ, S_WUK, S_WUV, S_WO, S_BX, S_WG, S_WU, S_WD, S_GW, S_OUT, S_DBG, S_WS = [4 + 2*i for i in range(14)]
def sp(a): return f"s[{a}:{a+1}]"
S_WAVE = 33
S_H = 34
S_J = 35
S_SELLO = 36
S_SELHI = 37
S_CNT = 38
S_T0 = 40
S_EX = 48
S_B = 50
S_S = 51
S_IDX = 52

def prologue(g, nwg, endlab):
    g.e(f"s_cmp_ge_u32 s2, {nwg}")
    g.e(f"s_cbranch_scc1 {endlab}")
    g.e("s_load_dwordx16 s[4:19], s[0:1], 0")
    g.e("s_load_dwordx8 s[20:27], s[0:1], 64")
    g.e("s_load_dwordx4 s[28:31], s[0:1], 96")
    g.e("v_and_b32 v1, 63, v0")
    g.e("v_lshrrev_b32 v2, 6, v0")
    g.e("s_nop 0")
    g.e(f"v_readfirstlane_b32 s{S_WAVE}, v2")
    g.e(f"s_mov_b32 s{S_SELLO}, 0x05040100")
    g.e(f"s_mov_b32 s{S_SELHI}, 0x07060302")
    g.e("s_waitcnt lgkmcnt(0)")

def fill(g):
    g.c("sentinel fill (service wave)")
    for i in range(4):
        g.e(f"v_mov_b32 v{4+i}, -1")
    g.e("v_lshlrev_b32 v8, 4, v1")
    g.e(f"s_lshl_b32 s{S_T0}, s{S_IDX}, 13")
    g.e(f"s_add_u32 s{S_T0}, s{S_T0}, {OUTP_OFF}")
    g.e(f"v_add_u32 v9, s{S_T0}, v8")
    for i in range(8):
        g.e(f"global_store_dwordx4 v9, v[4:7], {sp(S_WS)} offset:{(i%4)*1024} sc1")
        if i == 3: g.e("v_add_u32 v9, 0x1000, v9")
    g.e(f"s_mul_i32 s{S_T0}, s{S_IDX}, 1792")
    g.e(f"v_add_u32 v9, s{S_T0}, v8")
    g.e(f"global_store_dwordx4 v9, v[4:7], {sp(S_WS)} sc1")
    g.e("v_cmp_gt_u32 vcc, 48, v1")
    g.e(f"s_and_saveexec_b64 {sp(S_EX)}, vcc")
    g.e(f"global_store_dwordx4 v9, v[4:7], {sp(S_WS)} offset:1024 sc1")
    g.e(f"s_mov_b64 exec, {sp(S_EX)}")
    g.e("s_waitcnt vmcnt(0)")
    g.e("v_cmp_eq_u32 vcc, 0, v1")
    g.e(f"s_and_saveexec_b64 {sp(S_EX)}, vcc")
    g.e(f"s_and_b32 s{S_T0}, s{S_IDX}, 7")
    g.e(f"s_lshl_b32 s{S_T0}, s{S_T0}, 2")
    g.e(f"v_mov_b32 v4, s{S_T0}")
    g.e("v_mov_b32 v5, 1")
    g.e(f"global_atomic_add v4, v5, {sp(S_DBG)} sc1")
    g.e(f"s_mov_b64 exec, {sp(S_EX)}")

def fill_wait(g, vt=4):
    g.c("fill wait")
    L = g.nl("Lfw"); D = g.nl("Lfwd")
    g.e(f"s_cmp_lg_u32 s{S_WAVE}, 0")
    g.e(f"s_cbranch_scc1 {D}")
    g.e(f"s_mov_b32 s{S_CNT}, {MAXIT}")
    g.e(f"v_and_b32 v{vt}, 7, v1")
    g.e(f"v_lshlrev_b32 v{vt}, 2, v{vt}")
    g.lab(L)
    g.e(f"global_load_dword v{vt+1}, v{vt}, {sp(S_DBG)} sc1")
    g.e("s_waitcnt vmcnt(0)")
    g.e(f"v_cmp_ne_u32 vcc, 16, v{vt+1}")
    g.e(f"s_cbranch_vccz {D}")
    g.e(f"s_sub_u32 s{S_CNT}, s{S_CNT}, 1")
    g.e(f"s_cmp_eq_u32 s{S_CNT}, 0")
    g.e(f"s_cbranch_scc1 {D}")
    g.e("s_sleep 8")
    g.e(f"s_branch {L}")
    g.lab(D)
    g.e("s_barrier")

def fill_poll(g, vt=4):
    L = g.nl("Lfp"); D = g.nl("Lfpd")
    g.e(f"s_mov_b32 s{S_CNT}, {MAXIT}")
    g.e(f"v_and_b32 v{vt}, 7, v1")
    g.e(f"v_lshlrev_b32 v{vt}, 2, v{vt}")
    g.lab(L)
    g.e(f"global_load_dword v{vt+1}, v{vt}, {sp(S_DBG)} sc1")
    g.e("s_waitcnt vmcnt(0)")
    g.e(f"v_cmp_ne_u32 vcc, 16, v{vt+1}")
    g.e(f"s_cbranch_vccz {D}")
    g.e(f"s_sub_u32 s{S_CNT}, s{S_CNT}, 1")
    g.e(f"s_cmp_eq_u32 s{S_CNT}, 0")
    g.e(f"s_cbranch_scc1 {D}")
    g.e("s_sleep 8")
    g.e(f"s_branch {L}")
    g.lab(D)

def poll(g, issue, regs, vt):
    L = g.nl("Lp"); D = g.nl("Lpd")
    g.e(f"s_mov_b32 s{S_CNT}, {MAXIT}")
    g.lab(L)
    issue()
    g.vw0()
    rs = list(regs)
    g.e(f"v_max_u32 v{vt}, v{rs[0]}, v{rs[1]}")
    rs = rs[2:]
    while len(rs) >= 2:
        g.e(f"v_max3_u32 v{vt}, v{vt}, v{rs[0]}, v{rs[1]}"); rs = rs[2:]
    if rs:
        g.e(f"v_max_u32 v{vt}, v{vt}, v{rs[0]}")
    g.e(f"v_cmp_eq_u32 vcc, -1, v{vt}")
    g.e(f"s_cbranch_vccz {D}")
    g.e(f"s_sub_u32 s{S_CNT}, s{S_CNT}, 1")
    g.e(f"s_cmp_eq_u32 s{S_CNT}, 0")
    g.e(f"s_cbranch_scc1 {D}")
    g.e("s_sleep 1")
    g.e(f"s_branch {L}")
    g.lab(D)

def light_poll(g, vaddr, vt, sleep=6):
    L = g.nl("Llp"); D = g.nl("Llpd")
    g.e(f"s_mov_b32 s{S_CNT}, {MAXIT}")
    g.lab(L)
    g.e(f"global_load_dword v{vt}, v{vaddr}, {sp(S_WS)} sc1")
    g.vw0()
    g.e(f"v_cmp_eq_u32 vcc, -1, v{vt}")
    g.e(f"s_cbranch_vccz {D}")
    g.e(f"s_sub_u32 s{S_CNT}, s{S_CNT}, 1")
    g.e(f"s_cmp_eq_u32 s{S_CNT}, 0")
    g.e(f"s_cbranch_scc1 {D}")
    g.e(f"s_sleep {sleep}")
    g.e(f"s_branch {L}")
    g.lab(D)

def canon(g, r):
    g.e(f"v_min_u32 v{r}, -2, v{r}")

def dot_pairs(g, A, B, xp0, xp1, acc, t0=4, t1=5):
    for i in range(4):
        g.e(f"v_perm_b32 v{t0}, v{B+i}, v{A+i}, s{S_SELLO}")
        g.e(f"v_perm_b32 v{t1}, v{B+i}, v{A+i}, s{S_SELHI}")
        g.e(f"v_dot2c_f32_bf16 v{acc+2*i}, v{t0}, v{xp0}")
        g.e(f"v_dot2c_f32_bf16 v{acc+2*i+1}, v{t1}, v{xp0}")
        g.e(f"v_dot2c_f32_bf16 v{acc+8+2*i}, v{t0}, v{xp1}")
        g.e(f"v_dot2c_f32_bf16 v{acc+8+2*i+1}, v{t1}, v{xp1}")

def prepair(g, A, B, t0=4):
    for i in range(4):
        g.e(f"v_perm_b32 v{t0}, v{B+i}, v{A+i}, s{S_SELLO}")
        g.e(f"v_perm_b32 v{B+i}, v{B+i}, v{A+i}, s{S_SELHI}")
        g.e(f"v_mov_b32 v{A+i}, v{t0}")

def dot_prepaired(g, A, B, xp0, xp1, acc):
    for i in range(4):
        g.e(f"v_dot2c_f32_bf16 v{acc+2*i}, v{A+i}, v{xp0}")
        g.e(f"v_dot2c_f32_bf16 v{acc+2*i+1}, v{B+i}, v{xp0}")
        g.e(f"v_dot2c_f32_bf16 v{acc+8+2*i}, v{A+i}, v{xp1}")
        g.e(f"v_dot2c_f32_bf16 v{acc+8+2*i+1}, v{B+i}, v{xp1}")

def zero(g, base, n):
    for i in range(n):
        g.e(f"v_mov_b32 v{base+i}, 0")

B_RED = 0
B_QBF = 0x8000
B_CTXC = 0x8200
B_CTXP = 0x8400
B_HBF = 0x8600
V_ACC = 16
V_XP = 32
V_WQ = 64
V_UK = 192
V_UV = 224

def roleB_ids(g):
    g.e(f"s_and_b32 s{S_H}, s{S_IDX}, 31")
    g.e(f"s_lshr_b32 s{S_J}, s{S_IDX}, 5")
    g.e("v_lshrrev_b32 v2, 4, v1")
    g.e("v_and_b32 v3, 15, v1")

S_Q = 56
def quarters(g):
    for k in range(4):
        g.e(f"s_add_u32 s{S_Q+k}, s{S_J}, {k}")
        g.e(f"s_and_b32 s{S_Q+k}, s{S_Q+k}, 3")

def B1_loads(g, with_uv=True):
    g.c("B1 loads: x pairs, w_q (own quarter first), w_uk")
    quarters(g)
    g.e(f"s_lshl_b32 s{S_T0}, s{S_WAVE}, 6")
    g.e("v_lshlrev_b32 v12, 4, v2")
    g.e(f"v_add_u32 v12, s{S_T0}, v12")
    g.e(f"s_lshl_b32 s{S_T0}, s{S_WAVE}, 18")
    g.e(f"s_lshl_b32 s{S_T0+1}, s{S_H}, 8")
    g.e(f"s_add_u32 s{S_T0}, s{S_T0}, s{S_T0+1}")
    g.e("v_lshlrev_b32 v13, 16, v2")
    g.e("v_lshlrev_b32 v11, 4, v3")
    g.e("v_add_u32 v13, v13, v11")
    g.e(f"v_add_u32 v13, s{S_T0}, v13")
    def xl(k):
        g.e(f"s_lshl_b32 s{S_T0+2}, s{S_Q+k}, 8")
        g.e(f"v_add_u32 v10, s{S_T0+2}, v12")
        for b in range(2):
            g.e(f"global_load_dwordx4 {vr(V_XP+8*k+4*b,4)}, v10, {sp(S_X)} offset:{b*1024}"); g.vi("x")
    def wl(k):
        g.e(f"s_lshl_b32 s{S_T0+2}, s{S_Q+k}, 20")
        g.e(f"v_add_u32 v10, s{S_T0+2}, v13")
        for i in range(8):
            g.e(f"global_load_dwordx4 {vr(V_WQ+32*k+4*i,4)}, v10, {sp(S_WQ)}"); g.vi(f"wq{k}")
            if i < 7: g.e("v_add_u32 v10, 0x2000, v10")
    for k in range(4): xl(k)
    wl(0)
    g.e(f"s_lshl_b32 s{S_T0}, s{S_J}, 20")
    g.e(f"s_lshl_b32 s{S_T0+2}, s{S_WAVE}, 18")
    g.e(f"s_add_u32 s{S_T0}, s{S_T0}, s{S_T0+2}")
    g.e(f"s_add_u32 s{S_T0}, s{S_T0}, s{S_T0+1}")
    g.e("v_lshlrev_b32 v10, 13, v3")
    g.e("v_lshlrev_b32 v11, 4, v2")
    g.e("v_add_u32 v10, v10, v11")
    g.e(f"v_add_u32 v10, s{S_T0}, v10")
    for tl in range(2):
        for ks in range(4):
            g.e(f"global_load_dwordx4 {vr(V_UK+16*tl+4*ks,4)}, v10, {sp(S_WUK)} offset:{ks*64}"); g.vi("uk")
        if tl == 0: g.e("v_add_u32 v10, 0x20000, v10")
    g.vw("wq0")
    for k in range(1, 4): wl(k)

def uv_loads(g):
    g.e(f"s_lshl_b32 s{S_T0}, s{S_J}, 20")
    g.e(f"s_lshl_b32 s{S_T0+2}, s{S_WAVE}, 18")
    g.e(f"s_add_u32 s{S_T0}, s{S_T0}, s{S_T0+2}")
    g.e(f"s_lshl_b32 s{S_T0+1}, s{S_H}, 8")
    g.e(f"s_add_u32 s{S_T0}, s{S_T0}, s{S_T0+1}")
    g.e("v_lshlrev_b32 v10, 16, v2")
    g.e("v_lshlrev_b32 v11, 4, v3")
    g.e("v_add_u32 v10, v10, v11")
    g.e(f"v_add_u32 v10, s{S_T0}, v10")
    for i in range(8):
        g.e(f"global_load_dwordx4 {vr(V_UV+4*i,4)}, v10, {sp(S_WUV)}"); g.vi("uv")
        if i < 7: g.e("v_add_u32 v10, 0x2000, v10")

def red16_to_bf16(g, dst):
    g.e("s_waitcnt lgkmcnt(0)")
    g.e("s_barrier")
    g.e("v_lshlrev_b32 v10, 2, v0")
    for p in range(16):
        g.e(f"ds_read_b32 v{64+p}, v10 offset:{B_RED+p*1024}") if False else None
    return

def red_write16(g):
    g.e(f"s_lshl_b32 s{S_T0}, s{S_WAVE}, 12")
    g.e("v_lshlrev_b32 v10, 10, v2")
    g.e("v_lshlrev_b32 v11, 5, v3")
    g.e("v_add_u32 v10, v10, v11")
    g.e(f"v_add_u32 v10, s{S_T0}, v10")
    g.nop(1)
    for b in range(2):
        for q in range(2):
            g.e(f"ds_write_b128 v10, {vr(V_ACC+8*b+4*q,4)} offset:{B_RED+b*512+q*16}")

def red_sum(g, npart, stride, dst, tmp):
    g.e("s_waitcnt lgkmcnt(0)")
    g.e("s_barrier")
    g.e("v_lshlrev_b32 v10, 2, v0")
    for p in range(npart):
        g.e(f"ds_read_b32 v{tmp+p}, v10 offset:{B_RED+p*stride}")
    g.e("s_waitcnt lgkmcnt(0)")
    n = npart
    while n > 1:
        for p in range(n // 2):
            g.e(f"v_add_f32 v{tmp+p}, v{tmp+p}, v{tmp+p+n//2}")
        n //= 2
    g.e(f"v_cvt_pk_bf16_f32 v{tmp}, v{tmp}, v{tmp}")
    g.e("v_lshlrev_b32 v10, 1, v0")
    g.e(f"ds_write_b16 v10, v{tmp} offset:{dst}")
    g.e("s_waitcnt lgkmcnt(0)")
    g.e("s_barrier")

def B1_compute(g):
    g.c("S1: q = x @ wq[:,h,:]")
    zero(g, V_ACC, 16)
    for k in range(4):
        g.vw(f"wq{k}")
        for t in range(4):
            dot_pairs(g, V_WQ+32*k+8*t, V_WQ+32*k+8*t+4, V_XP+8*k+t, V_XP+8*k+4+t, V_ACC)
    g.nop(3)
    red_write16(g)
    red_sum(g, 16, 1024, B_QBF, V_XP)

def B1_s2(g):
    g.c("S2: qc = q @ wuk^T")
    g.e("v_and_b32 v10, 1, v1")
    g.e("v_lshlrev_b32 v10, 8, v10")
    g.e("v_lshlrev_b32 v11, 4, v2")
    g.e("v_add_u32 v10, v10, v11")
    for ks in range(4):
        g.e(f"ds_read_b128 {vr(V_XP+4*ks,4)}, v10 offset:{B_QBF+ks*64}")
    zero(g, V_ACC, 8)
    g.vw("uk")
    g.e("s_waitcnt lgkmcnt(0)")
    for ks in range(4):
        for tl in range(2):
            g.e(f"v_mfma_f32_16x16x32_bf16 {vr(V_ACC+4*tl,4)}, {vr(V_UK+16*tl+4*ks,4)}, {vr(V_XP+4*ks,4)}, {vr(V_ACC+4*tl,4)}")

def B1_store(g):
    g.e(f"s_lshl_b32 s{S_T0}, s{S_H}, 10")
    g.e(f"s_lshl_b32 s{S_T0+1}, s{S_J}, 8")
    g.e(f"s_add_u32 s{S_T0}, s{S_T0}, s{S_T0+1}")
    g.e(f"s_lshl_b32 s{S_T0+1}, s{S_WAVE}, 6")
    g.e(f"s_add_u32 s{S_T0}, s{S_T0}, s{S_T0+1}")
    g.e("v_lshlrev_b32 v10, 15, v3")
    g.e("v_lshlrev_b32 v11, 3, v2")
    g.e("v_add_u32 v10, v10, v11")
    g.e(f"v_add_u32 v10, s{S_T0}, v10")
    g.nop(8)
    for tl in range(2):
        g.e(f"v_cvt_pk_bf16_f32 v{4+2*tl}, v{V_ACC+4*tl}, v{V_ACC+4*tl+1}")
        g.e(f"v_cvt_pk_bf16_f32 v{5+2*tl}, v{V_ACC+4*tl+2}, v{V_ACC+4*tl+3}")
    for r in range(4, 8): canon(g, r)
    g.e("v_cmp_gt_u32 vcc, 2, v3")
    g.e(f"s_and_saveexec_b64 {sp(S_EX)}, vcc")
    for tl in range(2):
        g.e(f"global_store_dwordx2 v10, {vr(4+2*tl,2)}, {sp(S_WS)} offset:{QC_OFF+tl*32} sc1"); g.vi("st")
    g.e(f"s_mov_b64 exec, {sp(S_EX)}")

V_WO = 64
V_FG = 96
V_FU = 128
V_FD = 160
V_FX = 48
NFFN = 56

def B2_loads_wo(g, between=None):
    g.c("B2 loads: w_o")
    g.e(f"s_lshl_b32 s{S_T0}, s{S_H}, 17")
    g.e(f"s_lshl_b32 s{S_T0+1}, s{S_WAVE}, 13")
    g.e(f"s_add_u32 s{S_T0}, s{S_T0}, s{S_T0+1}")
    g.e("v_lshlrev_b32 v13, 4, v1")
    g.e(f"v_add_u32 v13, s{S_T0}, v13")
    for k in range(4):
        if k == 1:
            if between: between()
            g.vw("wo0")
        g.e(f"s_lshl_b32 s{S_T0+2}, s{S_Q+k}, 15")
        g.e(f"v_add_u32 v10, s{S_T0+2}, v13")
        for i in range(8):
            g.e(f"global_load_dwordx4 {vr(V_WO+32*k+4*i,4)}, v10, {sp(S_WO)} offset:{(i%4)*1024}"); g.vi(f"wo{k}")
            if i == 3: g.e("v_add_u32 v10, 0x1000, v10")

def B2_loads_ffn(g):
    g.c("B2 loads: ffn weights")
    g.e("v_lshrrev_b32 v12, 2, v1")
    g.e("v_and_b32 v13, 3, v1")
    g.e(f"s_lshl_b32 s{S_T0}, s{S_WAVE}, 8")
    g.e("v_lshlrev_b32 v10, 4, v12")
    g.e(f"v_add_u32 v10, s{S_T0}, v10")
    for b in range(2):
        g.e(f"global_load_dwordx4 {vr(V_FX+4*b,4)}, v10, {sp(S_X)} offset:{b*1024}"); g.vi("ffn")
    g.e(f"s_mul_i32 s{S_T0}, s{S_WAVE}, {128*3584}")
    g.e(f"s_lshl_b32 s{S_T0+1}, s{S_IDX}, 6")
    g.e(f"s_add_u32 s{S_T0}, s{S_T0}, s{S_T0+1}")
    g.e(f"s_mov_b32 s{S_T0+1}, {8*3584}")
    g.e(f"v_mul_lo_u32 v10, v12, s{S_T0+1}")
    g.e("v_lshlrev_b32 v11, 4, v13")
    g.e("v_add_u32 v10, v10, v11")
    g.e(f"v_add_u32 v10, s{S_T0}, v10")
    for r in range(8):
        g.e(f"global_load_dwordx4 {vr(V_FG+4*r,4)}, v10, {sp(S_WG)}"); g.vi("ffn")
        g.e(f"global_load_dwordx4 {vr(V_FU+4*r,4)}, v10, {sp(S_WU)}"); g.vi("ffn")
        if r < 7: g.e("v_add_u32 v10, 3584, v10")
    g.e(f"s_lshl_b32 s{S_T0}, s{S_IDX}, 15")
    g.e(f"s_lshl_b32 s{S_T0+1}, s{S_WAVE}, 13")
    g.e(f"s_add_u32 s{S_T0}, s{S_T0}, s{S_T0+1}")
    g.e("v_lshlrev_b32 v10, 4, v1")
    g.e(f"v_add_u32 v10, s{S_T0}, v10")
    for r in range(8):
        g.e(f"global_load_dwordx4 {vr(V_FD+4*r,4)}, v10, {sp(S_WD)} offset:{(r%4)*1024}"); g.vi("ffn")
        if r == 3: g.e("v_add_u32 v10, 0x1000, v10")

def red2_store(g, slot_sexpr_reg):
    g.e(f"s_lshl_b32 s{S_T0}, s{S_WAVE}, 12")
    g.e("v_lshlrev_b32 v10, 5, v1")
    g.e(f"v_add_u32 v10, s{S_T0}, v10")
    g.nop(2)
    for b in range(2):
        for q in range(2):
            g.e(f"ds_write_b128 v10, {vr(V_ACC+8*b+4*q,4)} offset:{B_RED+b*2048+q*16}")
    g.e("s_waitcnt lgkmcnt(0)")
    g.e("s_barrier")
    g.e("v_lshlrev_b32 v10, 4, v0")
    for w in range(4):
        g.e(f"ds_read_b128 {vr(V_ACC+4*w,4)}, v10 offset:{B_RED+w*4096}")
    g.e("s_waitcnt lgkmcnt(0)")
    for q in range(4):
        g.e(f"v_add_f32 v{V_ACC+q}, v{V_ACC+q}, v{V_ACC+4+q}")
        g.e(f"v_add_f32 v{V_ACC+8+q}, v{V_ACC+8+q}, v{V_ACC+12+q}")
    for q in range(4):
        g.e(f"v_add_f32 v{V_ACC+q}, v{V_ACC+q}, v{V_ACC+8+q}")
        canon(g, V_ACC+q)
    g.e(f"s_lshl_b32 s{S_T0}, s{slot_sexpr_reg}, 12")
    g.e(f"s_add_u32 s{S_T0}, s{S_T0}, {OUTP_OFF}")
    g.e(f"v_add_u32 v10, s{S_T0}, v10")
    g.e(f"global_store_dwordx4 v10, {vr(V_ACC,4)}, {sp(S_WS)} sc1"); g.vi("st")

def B2_ffn(g):
    g.c("FFN")
    g.e("v_lshrrev_b32 v12, 2, v1")
    g.e("v_and_b32 v13, 3, v1")
    zero(g, V_ACC, 16)
    for t in range(4):
        dot_pairs(g, V_FG+8*t, V_FG+8*t+4, V_FX+t, V_FX+4+t, V_ACC)
    zero(g, V_FG, 16)
    for t in range(4):
        dot_pairs(g, V_FU+8*t, V_FU+8*t+4, V_FX+t, V_FX+4+t, V_FG)
    g.nop(3)
    g.e(f"s_lshl_b32 s{S_T0}, s{S_WAVE}, 12")
    g.e("v_lshlrev_b32 v10, 8, v12")
    g.e("v_lshlrev_b32 v11, 5, v13")
    g.e("v_add_u32 v10, v10, v11")
    g.e(f"v_add_u32 v10, s{S_T0}, v10")
    for mat, base in ((0, V_ACC), (1, V_FG)):
        for b in range(2):
            for q in range(2):
                g.e(f"ds_write_b128 v10, {vr(base+8*b+4*q,4)} offset:{B_RED+mat*16384+b*128+q*16}")
    g.e("s_waitcnt lgkmcnt(0)")
    g.e("s_barrier")
    g.e("v_lshrrev_b32 v10, 7, v0")
    g.e("v_lshlrev_b32 v10, 14, v10")
    g.e("v_lshrrev_b32 v11, 6, v0")
    g.e("v_and_b32 v11, 1, v11")
    g.e("v_lshlrev_b32 v11, 13, v11")
    g.e("v_add_u32 v10, v10, v11")
    g.e("v_lshlrev_b32 v11, 2, v1")
    g.e("v_add_u32 v10, v10, v11")
    for p in range(16):
        g.e(f"ds_read_b32 v{V_ACC+p}, v10 offset:{B_RED+p*256}")
    for p in range(16):
        g.e(f"ds_read_b32 v{V_FG+p}, v10 offset:{B_RED+(16+p)*256}")
    g.e("s_waitcnt lgkmcnt(0)")
    for p in range(16):
        g.e(f"v_add_f32 v{V_ACC+p}, v{V_ACC+p}, v{V_FG+p}")
    for n in (8, 4, 2, 1):
        for p in range(n):
            g.e(f"v_add_f32 v{V_ACC+p}, v{V_ACC+p}, v{V_ACC+p+n}")
    g.e("v_lshlrev_b32 v10, 2, v0")
    g.e(f"ds_write_b32 v10, v{V_ACC} offset:{B_RED+32768+4096}")
    g.e("s_waitcnt lgkmcnt(0)")
    g.e("s_barrier")
    g.e("v_cmp_gt_u32 vcc, 64, v0")
    g.e(f"s_and_saveexec_b64 {sp(S_EX)}, vcc")
    sk2 = g.nl("Lffn32")
    g.e(f"s_cbranch_execz {sk2}")
    g.e("v_lshlrev_b32 v10, 2, v0")
    for p in range(4):
        g.e(f"ds_read_b32 v{V_ACC+p}, v10 offset:{B_RED+32768+4096+p*256}")
    g.e("s_waitcnt lgkmcnt(0)")
    g.e(f"v_add_f32 v4, v{V_ACC}, v{V_ACC+1}")
    g.e(f"v_add_f32 v5, v{V_ACC+2}, v{V_ACC+3}")
    g.e("v_mul_f32 v6, v4, v4")
    g.e(f"s_mov_b32 s{S_T0}, 0x3d122279")
    g.e(f"v_mov_b32 v7, 0x3f4c422a")
    g.e(f"v_fma_f32 v6, v6, s{S_T0}, v7")
    g.e("v_mul_f32 v6, v6, v4")
    g.e("v_mul_f32 v6, 0x4038aa3b, v6")
    g.e("v_exp_f32 v6, v6")
    g.nop(1)
    g.e("v_add_f32 v6, 1.0, v6")
    g.e("v_rcp_f32 v6, v6")
    g.nop(1)
    g.e("v_sub_f32 v6, 1.0, v6")
    g.e("v_mul_f32 v6, v6, v4")
    g.e("v_mul_f32 v6, v6, v5")
    g.e("v_cvt_pk_bf16_f32 v6, v6, v6")
    g.e("v_lshlrev_b32 v10, 1, v0")
    g.e(f"ds_write_b16 v10, v6 offset:{B_HBF}")
    g.lab(sk2)
    g.e(f"s_mov_b64 exec, {sp(S_EX)}")
    g.e("s_waitcnt lgkmcnt(0)")
    g.e("s_barrier")
    g.e(f"s_lshl_b32 s{S_T0}, s{S_WAVE}, 4")
    g.e(f"v_mov_b32 v10, s{S_T0}")
    for b in range(2):
        g.e(f"ds_read_b128 {vr(V_FX+4*b,4)}, v10 offset:{B_HBF+b*64}")
    zero(g, V_ACC, 16)
    g.e("s_waitcnt lgkmcnt(0)")
    for t in range(4):
        dot_pairs(g, V_FD+8*t, V_FD+8*t+4, V_FX+t, V_FX+4+t, V_ACC)
    g.nop(3)
    g.e(f"s_add_u32 s{S_T0+4}, s{S_IDX}, 128")
    red2_store(g, S_T0+4)
    g.e("s_barrier")

def B2_prep(g):
    g.c("pre-pair uv, wo in the shadow")
    for t in range(4):
        prepair(g, V_UV+8*t, V_UV+8*t+4)
    for t in range(16):
        prepair(g, V_WO+8*t, V_WO+8*t+4)

def wave_reduce(g, op, r, t):
    for ctl in ("quad_perm:[1,0,3,2]", "quad_perm:[2,3,0,1]", "row_half_mirror", "row_mirror"):
        g.nop(2)
        g.e(f"{op}_dpp v{r}, v{r}, v{r} {ctl} row_mask:0xf bank_mask:0xf")
    for sw in ("v_permlane16_swap_b32", "v_permlane32_swap_b32"):
        g.e(f"v_mov_b32 v{t}, v{r}")
        g.nop(2)
        g.e(f"{sw} v{r}, v{t}")
        g.nop(2)
        g.e(f"{op} v{r}, v{r}, v{t}")

V_PL = 192
def B2_s4(g):
    g.c("S4: combine partials")
    g.e(f"s_lshr_b32 s{S_B}, s{S_WAVE}, 1")
    g.e(f"s_and_b32 s{S_S}, s{S_WAVE}, 1")
    g.e(f"s_lshl_b32 s{S_T0}, s{S_B}, 5")
    g.e(f"s_add_u32 s{S_T0}, s{S_T0}, s{S_H}")
    g.e(f"s_lshl_b32 s{S_T0+1}, s{S_T0}, 9")
    g.e("v_lshlrev_b32 v12, 3, v1")
    g.e(f"v_add_u32 v12, s{S_T0+1}, v12")
    g.e(f"s_lshl_b32 s{S_T0+1}, s{S_T0}, 16")
    g.e(f"s_lshl_b32 s{S_T0+2}, s{S_S}, 15")
    g.e(f"s_add_u32 s{S_T0+1}, s{S_T0+1}, s{S_T0+2}")
    g.e(f"s_lshl_b32 s{S_T0+2}, s{S_J}, 8")
    g.e(f"s_add_u32 s{S_T0+1}, s{S_T0+1}, s{S_T0+2}")
    g.e(f"s_add_u32 s{S_T0+1}, s{S_T0+1}, {PART_OFF}")
    g.e("v_lshlrev_b32 v13, 10, v2")
    g.e("v_lshlrev_b32 v11, 4, v3")
    g.e("v_add_u32 v13, v13, v11")
    g.e(f"v_add_u32 v13, s{S_T0+1}, v13")
    g.e(f"v_add_u32 v12, {STAT_OFF}, v12")
    def issue():
        g.e(f"global_load_dwordx2 v[48:49], v12, {sp(S_WS)} sc1")
    poll(g, issue, [48, 49], 4)
    stamp(g, 8)
    for i in range(8):
        g.e(f"global_load_dwordx4 {vr(V_PL+4*i,4)}, v13, {sp(S_WS)} sc1"); g.vi("pl")
        if i < 7: g.e("v_add_u32 v13, 0x1000, v13")
    g.e("v_mov_b32 v50, v48")
    wave_reduce(g, "v_max_f32", 50, 51)
    g.e("v_sub_f32 v50, v48, v50")
    g.e("v_exp_f32 v50, v50")
    g.nop(1)
    g.e("v_mul_f32 v52, v50, v49")
    wave_reduce(g, "v_add_f32", 52, 51)
    g.e("v_rcp_f32 v52, v52")
    g.nop(1)
    g.e("v_mul_f32 v50, v50, v52")
    g.e(f"s_lshl_b32 s{S_T0}, s{S_S}, 7")
    g.e("v_lshlrev_b32 v10, 2, v2")
    g.e(f"v_add_u32 v10, s{S_T0}, v10")
    for i in range(8):
        g.e(f"ds_bpermute_b32 v{52+i}, v10, v50 offset:{16*i}")
    zero(g, V_ACC, 8)
    g.e("s_waitcnt lgkmcnt(0)")
    g.vw0()
    for i in range(8):
        for q in range(4):
            r = V_PL+4*i+q
            g.e(f"v_lshlrev_b32 v4, 16, v{r}")
            g.e(f"v_and_b32 v5, 0xffff0000, v{r}")
            g.e(f"v_fmac_f32 v{V_ACC+2*q}, v{52+i}, v4")
            g.e(f"v_fmac_f32 v{V_ACC+2*q+1}, v{52+i}, v5")
    g.e(f"s_lshl_b32 s{S_T0}, s{S_WAVE}, 11")
    g.e("v_lshlrev_b32 v10, 9, v2")
    g.e("v_lshlrev_b32 v11, 5, v3")
    g.e("v_add_u32 v10, v10, v11")
    g.e(f"v_add_u32 v10, s{S_T0}, v10")
    for q in range(2):
        g.e(f"ds_write_b128 v10, {vr(V_ACC+4*q,4)} offset:{B_RED+q*16}")
    g.e("s_waitcnt lgkmcnt(0)")
    g.e("s_barrier")
    g.e("v_lshrrev_b32 v10, 7, v0")
    g.e("v_lshlrev_b32 v10, 12, v10")
    g.e("v_and_b32 v11, 127, v0")
    g.e("v_lshlrev_b32 v11, 2, v11")
    g.e("v_add_u32 v10, v10, v11")
    for p in range(8):
        g.e(f"ds_read_b32 v{48+p}, v10 offset:{B_RED+p*512}")
    g.e("s_waitcnt lgkmcnt(0)")
    for n in (4, 2, 1):
        for p in range(n):
            g.e(f"v_add_f32 v{48+p}, v{48+p}, v{48+p+n}")
    g.e("v_cvt_pk_bf16_f32 v48, v48, v48")
    g.e("v_lshlrev_b32 v10, 1, v0")
    g.e(f"ds_write_b16 v10, v48 offset:{B_CTXC}")
    g.e("s_waitcnt lgkmcnt(0)")
    g.e("s_barrier")
    g.c("uv")
    g.e(f"s_lshl_b32 s{S_T0}, s{S_WAVE}, 6")
    g.e("v_lshlrev_b32 v10, 4, v2")
    g.e(f"v_add_u32 v10, s{S_T0}, v10")
    for b in range(2):
        g.e(f"ds_read_b128 {vr(48+4*b,4)}, v10 offset:{B_CTXC+b*256}")
    zero(g, V_ACC, 16)
    g.e("s_waitcnt lgkmcnt(0)")
    for t in range(4):
        dot_prepaired(g, V_UV+8*t, V_UV+8*t+4, 48+t, 52+t, V_ACC)
    g.nop(3)
    red_write16(g)
    red_sum(g, 16, 1024, B_CTXP, 192)
    g.c("o-proj")
    g.e(f"s_lshl_b32 s{S_T0}, s{S_WAVE}, 4")
    for k in range(4):
        g.e(f"s_lshl_b32 s{S_T0+1}, s{S_Q+k}, 6")
        g.e(f"s_add_u32 s{S_T0+1}, s{S_T0+1}, s{S_T0}")
        g.e(f"v_mov_b32 v10, s{S_T0+1}")
        for b in range(2):
            g.e(f"ds_read_b128 {vr(192+8*k+4*b,4)}, v10 offset:{B_CTXP+b*256}")
    zero(g, V_ACC, 16)
    g.e("s_waitcnt lgkmcnt(0)")
    for k in range(4):
        for t in range(4):
            dot_prepaired(g, V_WO+32*k+8*t, V_WO+32*k+8*t+4, 192+8*k+t, 192+8*k+4+t, V_ACC)
    g.nop(3)
    red2_store(g, S_IDX)

A_QC = 131072
A_PF = 0
A_MX = 8192
A_LS = 8192 + 512
A_OUT = 0

def swz(r):
    return ((r & 3) << 2) | ((r >> 2) & 3)

def roleA_ids(g):
    g.e(f"s_lshr_b32 s{S_B}, s{S_IDX}, 6")
    g.e(f"s_and_b32 s{S_S}, s{S_IDX}, 63")

DMA_THR = 4
def A_dma(g):
    g.c("c_kv tile DMA")
    g.e(f"s_lshl_b32 s{S_T0}, s{S_B}, 23")
    g.e(f"s_lshl_b32 s{S_T0+1}, s{S_S}, 17")
    g.e(f"s_add_u32 s{S_T0}, s{S_T0}, s{S_T0+1}")
    g.e(f"s_lshl_b32 s{S_T0+1}, s{S_WAVE}, 15")
    g.e(f"s_add_u32 s{S_T0}, s{S_T0}, s{S_T0+1}")
    g.e(f"s_add_u32 s54, s{S_CKV}, s{S_T0}")
    g.e(f"s_addc_u32 s55, s{S_CKV+1}, 0")
    g.e("s_add_u32 s56, s54, 16384")
    g.e("s_addc_u32 s57, s55, 0")
    for i in range(16):
        g.e(f"v_xor_b32 v{16+i}, {swz(i)}, v1")
        g.e(f"v_lshlrev_b32 v{16+i}, 4, v{16+i}")
        if i & 12:
            g.e(f"v_add_u32 v{16+i}, {(i&12)*1024}, v{16+i}")
    g.e(f"s_lshl_b32 s{S_T0}, s{S_WAVE}, 15")
    for q in range(2):
        for i0 in range(0, 16, 4):
            g.e(f"s_add_u32 s{S_T0+1}, s{S_T0}, {q*16384+i0*1024}")
            g.e(f"s_mov_b32 m0, s{S_T0+1}")
            g.e("s_nop 0")
            for i in range(i0, i0+4):
                g.e(f"global_load_lds_dwordx4 v{16+i}, s[{54+2*q}:{55+2*q}] offset:{(i&3)*1024}"); g.vi("dma")
            if DMA_THR: g.e(f"s_waitcnt vmcnt({DMA_THR})")

V_QL = 64
def A_qc(g):
    g.c("QC load + stage to LDS")
    g.e(f"s_lshl_b32 s{S_T0}, s{S_B}, 15")
    g.e("v_lshlrev_b32 v12, 4, v0")
    g.e(f"v_add_u32 v12, s{S_T0}, v12")
    g.e(f"s_lshl_b32 s{S_T0+1}, s{S_WAVE}, 10")
    g.e(f"s_add_u32 s{S_T0+1}, s{S_T0+1}, s{S_T0}")
    g.e("v_and_b32 v10, 31, v1")
    g.e("v_lshlrev_b32 v11, 8, v10")
    g.e("v_lshrrev_b32 v10, 2, v10")
    g.e("v_mul_u32_u24 v10, 3072, v10")
    g.e("v_add_u32 v10, v10, v11")
    g.e(f"v_add_u32 v10, s{S_T0+1}, v10")
    g.e("v_add_u32 v10, 252, v10")
    light_poll(g, 10, 4)
    def issue():
        g.e("v_mov_b32 v10, v12")
        for i in range(8):
            g.e(f"global_load_dwordx4 {vr(V_QL+4*i,4)}, v10, {sp(S_WS)} sc1")
            if i < 7: g.e("v_add_u32 v10, 0x1000, v10")
    poll(g, issue, list(range(V_QL, V_QL+32)), 4)
    stamp(g, 4)
    g.e(f"s_lshl_b32 s{S_T0}, s{S_WAVE}, 2")
    g.e(f"s_lshl_b32 s{S_T0+1}, s{S_WAVE}, 10")
    g.e(f"s_add_u32 s{S_T0+1}, s{S_T0+1}, {A_QC}")
    for i in range(4):
        g.e(f"v_xor_b32 v{4+i}, {i}, v1")
        g.e(f"v_xor_b32 v{4+i}, s{S_T0}, v{4+i}")
        g.e(f"v_lshlrev_b32 v{4+i}, 4, v{4+i}")
        g.e(f"v_add_u32 v{4+i}, s{S_T0+1}, v{4+i}")
    for i in range(8):
        g.e(f"ds_write_b128 v{4+(i&3)}, {vr(V_QL+4*i,4)} offset:{i*4096}")
    g.e("s_waitcnt lgkmcnt(0)")
    g.e("s_barrier")

V_SA = 16
V_SB = 24
V_S = 32
V_BUF = 96
def A_qk(g):
    g.c("QK^T")
    g.e("v_and_b32 v4, 31, v1")
    g.e("v_lshrrev_b32 v5, 5, v1")
    g.e("v_and_b32 v6, 3, v1")
    g.e("v_lshlrev_b32 v6, 2, v6")
    g.e("v_lshrrev_b32 v7, 2, v1")
    g.e("v_and_b32 v7, 3, v7")
    g.e("v_or_b32 v6, v6, v7")
    g.e("v_lshlrev_b32 v4, 10, v4")
    g.e(f"s_lshl_b32 s{S_T0}, s{S_WAVE}, 15")
    for ep in range(8):
        g.e(f"v_add_u32 v7, {2*ep}, v5")
        g.e("v_xor_b32 v7, v7, v6")
        g.e("v_lshlrev_b32 v7, 4, v7")
        g.e("v_add_u32 v7, v7, v4")
        g.e(f"v_add_u32 v{V_SA+ep}, s{S_T0}, v7")
        g.e(f"v_add_u32 v{V_SB+ep}, {A_QC}, v7")
    zero(g, V_S, 16)
    def rd(s):
        a, ep = s // 8, s % 8
        bb = V_BUF + 8*(s % 4)
        g.e(f"ds_read_b128 {vr(bb,4)}, v{V_SA+ep} offset:{a*256}")
        g.e(f"ds_read_b128 {vr(bb+4,4)}, v{V_SB+ep} offset:{a*256}")
    for s in range(4): rd(s)
    for s in range(32):
        out = min(3, 31 - s) * 2
        g.e(f"s_waitcnt lgkmcnt({out})")
        bb = V_BUF + 8*(s % 4)
        g.e(f"v_mfma_f32_32x32x16_bf16 {vr(V_S,16)}, {vr(bb,4)}, {vr(bb+4,4)}, {vr(V_S,16)}")
        if s + 4 < 32: rd(s + 4)
    g.e("s_barrier")
    g.nop(12)

V_PFR = 128
def A_softmax(g):
    g.c("softmax")
    g.e(f"v_max3_f32 v4, v{V_S}, v{V_S+1}, v{V_S+2}")
    for i in range(3, 15, 2):
        g.e(f"v_max3_f32 v4, v4, v{V_S+i}, v{V_S+i+1}")
    g.e(f"v_max_f32 v4, v4, v{V_S+15}")
    g.e("v_mov_b32 v5, v4")
    g.nop(2)
    g.e("v_permlane32_swap_b32 v4, v5")
    g.nop(2)
    g.e("v_max_f32 v4, v4, v5")
    g.e("v_and_b32 v6, 31, v1")
    g.e("v_lshlrev_b32 v6, 2, v6")
    g.e(f"v_add_u32 v6, {A_QC}, v6")
    g.e(f"s_lshl_b32 s{S_T0}, s{S_WAVE}, 7")
    g.e(f"v_add_u32 v7, s{S_T0}, v6")
    g.e(f"ds_write_b32 v7, v4 offset:{A_MX}")
    g.e("s_waitcnt lgkmcnt(0)")
    g.e("s_barrier")
    for w in range(4):
        g.e(f"ds_read_b32 v{8+w}, v6 offset:{A_MX+w*128}")
    g.e("s_waitcnt lgkmcnt(0)")
    g.e("v_max3_f32 v8, v8, v9, v10")
    g.e("v_max_f32 v8, v8, v11")
    g.e(f"s_mov_b32 s{S_T0+1}, 0x3e0293ee")
    g.e(f"v_mul_f32 v8, s{S_T0+1}, v8")
    for i in range(16):
        g.e(f"v_fma_f32 v{V_S+i}, v{V_S+i}, s{S_T0+1}, -v8")
    for i in range(16):
        g.e(f"v_exp_f32 v{V_S+i}, v{V_S+i}")
    g.nop(1)
    g.e(f"v_add_f32 v9, v{V_S}, v{V_S+1}")
    for i in range(2, 16):
        g.e(f"v_add_f32 v9, v9, v{V_S+i}")
    g.e("v_mov_b32 v10, v9")
    g.nop(2)
    g.e("v_permlane32_swap_b32 v9, v10")
    g.nop(2)
    g.e("v_add_f32 v9, v9, v10")
    g.e(f"ds_write_b32 v7, v9 offset:{A_LS}")
    for t in range(2):
        for q in range(4):
            g.e(f"v_cvt_pk_bf16_f32 v{12+q}, v{V_S+8*t+2*q}, v{V_S+8*t+2*q+1}") if t == 0 else g.e(f"v_cvt_pk_bf16_f32 v{V_S+q}, v{V_S+8*t+2*q}, v{V_S+8*t+2*q+1}")
    g.e(f"s_lshl_b32 s{S_T0}, s{S_WAVE}, 11")
    g.e("v_lshlrev_b32 v11, 4, v1")
    g.e(f"v_add_u32 v11, {A_QC}, v11")
    g.e(f"v_add_u32 v7, s{S_T0}, v11")
    g.e(f"ds_write_b128 v7, v[12:15] offset:{A_PF}")
    g.e(f"ds_write_b128 v7, {vr(V_S,4)} offset:{A_PF+1024}")
    g.e("s_waitcnt lgkmcnt(0)")
    g.e("s_barrier")
    for ks in range(8):
        g.e(f"ds_read_b128 {vr(V_PFR+4*ks,4)}, v11 offset:{A_PF+ks*1024}")
    for w in range(4):
        g.e(f"ds_read_b32 v{12+w}, v6 offset:{A_LS+w*128}")
    g.e("s_waitcnt lgkmcnt(0)")
    g.e("v_add_f32 v12, v12, v13")
    g.e("v_add_f32 v14, v14, v15")
    g.e("v_add_f32 v9, v12, v14")
    g.e("v_mov_b32 v2, v8")
    g.e("v_mov_b32 v3, v9")

V_PA = 16
V_O = 192
V_PB = 96
def A_pv(g):
    g.c("PV")
    g.e("v_lshrrev_b32 v4, 2, v1")
    g.e("v_and_b32 v4, 3, v4")
    g.e("v_lshrrev_b32 v5, 4, v1")
    g.e("v_and_b32 v5, 1, v5")
    g.e("v_lshlrev_b32 v5, 1, v5")
    g.e("v_lshrrev_b32 v6, 1, v1")
    g.e("v_and_b32 v6, 1, v6")
    g.e("v_or_b32 v5, v5, v6")
    g.e("v_lshrrev_b32 v6, 5, v1")
    g.e("v_and_b32 v7, 1, v1")
    g.e("v_lshlrev_b32 v7, 3, v7")
    g.e("v_lshlrev_b32 v8, 2, v6")
    g.e("v_add_u32 v8, v8, v4")
    g.e("v_lshlrev_b32 v8, 10, v8")
    g.e("v_add_u32 v8, v8, v7")
    g.e(f"s_lshl_b32 s{S_T0}, s{S_WAVE}, 8")
    g.e(f"v_add_u32 v8, s{S_T0}, v8")
    for ctl in range(4):
        for u in range(2):
            g.e(f"v_xor_b32 v9, {ctl}, v4")
            g.e("v_lshlrev_b32 v9, 2, v9")
            g.e(f"v_add_u32 v10, {2*u}, v6")
            g.e("v_xor_b32 v10, v10, v5")
            g.e("v_or_b32 v9, v9, v10")
            g.e("v_lshlrev_b32 v9, 4, v9")
            g.e("v_add_u32 v9, v9, v8")
            g.e(f"v_add_u32 v{V_PA+2*ctl+u}, {u*8192}, v9")
            g.e(f"v_add_u32 v{V_PA+8+2*ctl+u}, {u*8192+65536}, v9")
    zero(g, V_O, 64)
    steps = [(ks, ctl) for ks in range(8) for ctl in range(4)]
    def rd(n):
        ks, ctl = steps[n]
        bb = V_PB + 4*(n % 4)
        hi = 8 if ks >= 4 else 0
        for u in range(2):
            g.e(f"ds_read_b64_tr_b16 {vr(bb+2*u,2)}, v{V_PA+hi+2*ctl+u} offset:{(ks%4)*16384}")
    for n in range(4): rd(n)
    for n in range(32):
        ks, ctl = steps[n]
        out = min(3, 31 - n) * 2
        g.e(f"s_waitcnt lgkmcnt({out})")
        bb = V_PB + 4*(n % 4)
        g.e(f"v_mfma_f32_32x32x16_bf16 {vr(V_O+16*ctl,16)}, {vr(bb,4)}, {vr(V_PFR+4*ks,4)}, {vr(V_O+16*ctl,16)}")
        if n + 4 < 32: rd(n + 4)
    g.e("s_barrier")
    g.nop(12)
    g.c("transpose via LDS and store")
    g.e("v_and_b32 v4, 31, v1")
    g.e(f"v_mov_b32 v5, 1040")
    g.e("v_mul_lo_u32 v4, v4, v5")
    g.e("v_lshlrev_b32 v5, 3, v6")
    g.e("v_add_u32 v4, v4, v5")
    g.e(f"s_lshl_b32 s{S_T0}, s{S_WAVE}, 8")
    g.e(f"v_add_u32 v4, s{S_T0}, v4")
    for ctl in range(4):
        for gg in range(4):
            r = V_O + 16*ctl + 4*gg
            t = 8 + 2*(gg & 1)
            g.e(f"v_cvt_pk_bf16_f32 v{t}, v{r}, v{r+1}")
            g.e(f"v_cvt_pk_bf16_f32 v{t+1}, v{r+2}, v{r+3}")
            g.e(f"ds_write_b64 v4, {vr(t,2)} offset:{A_OUT+ctl*64+gg*16}")
    g.e("s_waitcnt lgkmcnt(0)")
    g.e("s_barrier")
    g.e(f"s_mul_i32 s{S_T0}, s{S_WAVE}, {8*1040}")
    g.e("v_lshlrev_b32 v4, 4, v1")
    g.e(f"v_add_u32 v5, s{S_T0}, v4")
    for r in range(8):
        g.e(f"ds_read_b128 {vr(64+4*r,4)}, v5 offset:{A_OUT+r*1040}")
    g.e(f"s_lshl_b32 s{S_T0}, s{S_B}, 21")
    g.e(f"s_lshl_b32 s{S_T0+1}, s{S_WAVE}, 19")
    g.e(f"s_add_u32 s{S_T0}, s{S_T0}, s{S_T0+1}")
    g.e(f"s_lshl_b32 s{S_T0+1}, s{S_S}, 10")
    g.e(f"s_add_u32 s{S_T0}, s{S_T0}, s{S_T0+1}")
    g.e(f"s_add_u32 s{S_T0}, s{S_T0}, {PART_OFF}")
    g.e(f"v_add_u32 v4, s{S_T0}, v4")
    for r in range(8):
        g.e(f"s_waitcnt lgkmcnt({7-r})")
        for q in range(4): canon(g, 64+4*r+q)
        g.e(f"global_store_dwordx4 v4, {vr(64+4*r,4)}, {sp(S_WS)} sc1"); g.vi("st")
        if r < 7: g.e("v_add_u32 v4, 0x10000, v4")
    g.vw0()
    g.e("s_barrier")
    sk = g.nl("Lst")
    g.e(f"s_cmp_lg_u32 s{S_WAVE}, 0")
    g.e(f"s_cbranch_scc1 {sk}")
    g.e(f"s_lshl_b32 s{S_T0}, s{S_B}, 14")
    g.e(f"s_lshl_b32 s{S_T0+1}, s{S_S}, 3")
    g.e(f"s_add_u32 s{S_T0}, s{S_T0}, s{S_T0+1}")
    g.e(f"s_add_u32 s{S_T0}, s{S_T0}, {STAT_OFF}")
    g.e("v_and_b32 v10, 31, v1")
    g.e("v_lshlrev_b32 v10, 9, v10")
    g.e(f"v_add_u32 v10, s{S_T0}, v10")
    g.e("v_cmp_gt_u32 vcc, 32, v1")
    g.e(f"s_and_saveexec_b64 {sp(S_EX)}, vcc")
    g.e(f"global_store_dwordx2 v10, v[2:3], {sp(S_WS)} sc1")
    g.e(f"s_mov_b64 exec, {sp(S_EX)}")
    g.lab(sk)

F_RED = 0
def F_gate_loads(g):
    g.e(f"s_lshr_b32 s{S_T0}, s{S_IDX}, 4")
    g.e(f"s_lshl_b32 s{S_T0}, s{S_T0}, 10")
    g.e("v_lshlrev_b32 v10, 4, v1")
    g.e(f"v_add_u32 v11, s{S_T0}, v10")
    g.e(f"global_load_dwordx4 v[240:243], v11, {sp(S_X)}"); g.vi("gx")
    g.e(f"global_load_dwordx4 v[244:247], v10, {sp(S_GW)}"); g.vi("gx")

def F_gate(g):
    g.vw("gx")
    g.e("v_mov_b32 v248, 0")
    for q in range(4):
        g.e(f"v_dot2c_f32_bf16 v248, v{240+q}, v{244+q}")
    g.nop(3)
    wave_reduce(g, "v_add_f32", 248, 249)
    g.e("v_mul_f32 v248, 0xbfb8aa3b, v248")
    g.e("v_exp_f32 v248, v248")
    g.nop(1)
    g.e("v_add_f32 v248, 1.0, v248")
    g.e("v_rcp_f32 v248, v248")
    g.nop(2)
    g.e("v_readfirstlane_b32 s60, v248")

def F_final(g):
    g.c("final reduce (idx<32)")
    g.e(f"s_lshl_b32 s{S_T0}, s{S_WAVE}, 15")
    g.e(f"s_lshl_b32 s{S_T0+1}, s{S_IDX}, 7")
    g.e(f"s_add_u32 s{S_T0}, s{S_T0}, s{S_T0+1}")
    g.e(f"s_add_u32 s{S_T0}, s{S_T0}, {OUTP_OFF}")
    g.e("v_lshrrev_b32 v12, 3, v1")
    g.e("v_lshlrev_b32 v12, 12, v12")
    g.e("v_and_b32 v13, 7, v1")
    g.e("v_lshlrev_b32 v13, 4, v13")
    g.e("v_add_u32 v12, v12, v13")
    g.e(f"v_add_u32 v12, s{S_T0}, v12")
    zero(g, 84, 4)
    g.e("v_lshrrev_b32 v10, 3, v1")
    g.e("v_lshlrev_b32 v10, 17, v10")
    g.e("v_and_b32 v11, 7, v1")
    g.e("v_lshlrev_b32 v11, 12, v11")
    g.e("v_add_u32 v10, v10, v11")
    g.e(f"v_add_u32 v10, s{S_T0}, v10")
    g.e(f"s_cmp_lt_u32 s{S_WAVE}, 3")
    g.e(f"s_cselect_b32 s{S_T0+1}, 48, 40")
    g.e(f"v_cmp_gt_u32 vcc, s{S_T0+1}, v1")
    g.e(f"s_and_saveexec_b64 {sp(S_EX)}, vcc")
    light_poll(g, 10, 4)
    g.e(f"s_mov_b64 exec, {sp(S_EX)}")
    def issue():
        g.e("v_mov_b32 v10, v12")
        for r in range(5):
            g.e(f"global_load_dwordx4 {vr(64+4*r,4)}, v10, {sp(S_WS)} sc1")
            g.e("v_add_u32 v10, 0x20000, v10")
        sk = g.nl("Lf7")
        g.e(f"s_cmp_ge_u32 s{S_WAVE}, 3")
        g.e(f"s_cbranch_scc1 {sk}")
        g.e(f"global_load_dwordx4 {vr(84,4)}, v10, {sp(S_WS)} sc1")
        g.lab(sk)
    poll(g, issue, list(range(64, 88)), 4)
    for q in range(4):
        g.e(f"v_add_f32 v{64+q}, v{64+q}, v{68+q}")
        g.e(f"v_add_f32 v{72+q}, v{72+q}, v{76+q}")
        g.e(f"v_add_f32 v{80+q}, v{80+q}, v{84+q}")
    for q in range(4):
        g.e(f"v_add_f32 v{64+q}, v{64+q}, v{72+q}")
        g.e(f"v_mov_b32 v{68+q}, v{80+q}")
    g.e(f"s_lshl_b32 s{S_T0}, s{S_WAVE}, 10")
    g.e("v_lshrrev_b32 v10, 3, v1")
    g.e("v_lshlrev_b32 v10, 7, v10")
    g.e("v_add_u32 v10, v10, v13")
    g.e(f"v_add_u32 v10, s{S_T0}, v10")
    g.e(f"ds_write_b128 v10, v[64:67] offset:{F_RED}")
    g.e(f"ds_write_b128 v10, v[68:71] offset:{F_RED+4096}")
    g.e("s_waitcnt lgkmcnt(0)")
    g.e("s_barrier")
    sk = g.nl("Lfin")
    g.e(f"s_cmp_lg_u32 s{S_WAVE}, 0")
    g.e(f"s_cbranch_scc1 {sk}")
    g.e("v_lshrrev_b32 v10, 5, v1")
    g.e("v_lshlrev_b32 v10, 12, v10")
    g.e("v_and_b32 v11, 31, v1")
    g.e("v_lshlrev_b32 v11, 2, v11")
    g.e("v_add_u32 v10, v10, v11")
    for p in range(32):
        g.e(f"ds_read_b32 v{64+p}, v10 offset:{F_RED+p*128}")
    g.e("s_waitcnt lgkmcnt(0)")
    for n in (16, 8, 4, 2, 1):
        for p in range(n):
            g.e(f"v_add_f32 v{64+p}, v{64+p}, v{64+p+n}")
    g.e("v_mov_b32 v248, s60")
    g.e("v_sub_f32 v5, 1.0, v248")
    g.e("v_cmp_gt_u32 vcc, 32, v1")
    g.nop(2)
    g.e("v_cndmask_b32 v5, v5, v248, vcc")
    g.e("v_mul_f32 v64, v64, v5")
    g.e("v_mov_b32 v65, v64")
    g.nop(2)
    g.e("v_permlane32_swap_b32 v64, v65")
    g.nop(2)
    g.e("v_add_f32 v64, v64, v65")
    g.nop(2)
    g.e("v_mov_b32_dpp v65, v64 quad_perm:[1,0,3,2] row_mask:0xf bank_mask:0xf")
    g.e("v_cvt_pk_bf16_f32 v64, v64, v65")
    g.e(f"s_lshl_b32 s{S_T0}, s{S_IDX}, 6")
    g.e("v_lshrrev_b32 v10, 1, v1")
    g.e("v_lshlrev_b32 v10, 2, v10")
    g.e(f"v_add_u32 v10, s{S_T0}, v10")
    g.e("v_and_b32 v11, 33, v1")
    g.e("v_cmp_eq_u32 vcc, 0, v11")
    g.e(f"s_and_saveexec_b64 {sp(S_EX)}, vcc")
    g.e(f"global_store_dword v10, v64, {sp(S_OUT)}")
    g.e(f"s_mov_b64 exec, {sp(S_EX)}")
    g.lab(sk)

def header(launches):
    s = open("cdna_kernels/" + KNAME[:-7] + ".s.ref").read().split("\n")
    hdr = [l for l in s if l.startswith(";") and "@launch" not in l]
    return "\n".join(hdr) + "\n" + "\n".join(launches) + "\n" + '.amdgcn_target "amdgcn-amd-amdhsa--gfx950"\n.text\n'

def kernel_open(name):
    return f".globl {name}\n.p2align 8\n.type {name},@function\n{name}:\n"

def kd(name, nv=256):
    return f""".amdhsa_kernel {name}
  .amdhsa_next_free_vgpr {nv}
  .amdhsa_next_free_sgpr 102
  .amdhsa_accum_offset {nv}
  .amdhsa_group_segment_fixed_size 0
  .amdhsa_kernarg_size 112
  .amdhsa_user_sgpr_count 2
  .amdhsa_user_sgpr_kernarg_segment_ptr 1
  .amdhsa_system_sgpr_workgroup_id_x 1
.end_amdhsa_kernel
"""

def tlb_warm(g, items):
    r = 80
    for base, off in items:
        if off < (1 << 20):
            g.e(f"s_load_dword s{r}, {sp(base)}, {off}")
        else:
            g.e(f"s_add_u32 s62, s{base}, {off}")
            g.e(f"s_addc_u32 s63, s{base+1}, 0")
            g.e(f"s_load_dword s{r}, s[62:63], 0")
        r += 1
        if r > 99: r = 80

def svc_fill(g):
    sk = g.nl("Lsvc")
    g.e(f"s_cmp_lg_u32 s{S_WAVE}, 3")
    g.e(f"s_cbranch_scc1 {sk}")
    fill(g)
    g.lab(sk)

def build_multi():
    ks = []
    g = G(); prologue(g, 128, "k0_end"); g.e(f"s_mov_b32 s{S_IDX}, s2"); svc_fill(g); g.lab("k0_end"); g.e("s_endpgm"); ks.append(("k0_fill_kernel", 128, g))
    g = G(); prologue(g, 128, "k1_end"); g.e(f"s_mov_b32 s{S_IDX}, s2"); roleB_ids(g); B1_loads(g, with_uv=False); B1_compute(g); B1_s2(g); B1_store(g)
    g.lab("k1_end"); g.e("s_endpgm"); ks.append(("k1_b1_kernel", 128, g))
    g = G(); prologue(g, 128, "k2_end"); g.e(f"s_mov_b32 s{S_IDX}, s2"); roleA_ids(g); A_dma(g); A_qc(g); A_qk(g); A_softmax(g); A_pv(g)
    g.lab("k2_end"); g.e("s_endpgm"); ks.append(("k2_attn_kernel", 128, g))
    g = G(); prologue(g, 128, "k3_end"); g.e(f"s_mov_b32 s{S_IDX}, s2"); roleB_ids(g); B2_loads_ffn(g); B2_loads_wo(g); g.vw0(); B2_ffn(g); B2_prep(g); B2_s4(g)
    g.lab("k3_end"); g.e("s_endpgm"); ks.append(("k3_b2_kernel", 128, g))
    g = G(); prologue(g, 32, "k4_end"); g.e(f"s_mov_b32 s{S_IDX}, s2"); F_gate_loads(g); F_gate(g); F_final(g)
    g.lab("k4_end"); g.e("s_endpgm"); ks.append((KNAME, 32, g))
    launches = [f"; @launch kernel={n} grid=({w},1,1) block=(256,1,1) lds={LDS_BYTES}" for n, w, _ in ks]
    s = header(launches)
    for n, w, g in ks:
        s += kernel_open(n) + "\n".join(g.L) + "\n"
    s += '.section .rodata,"a"\n.p2align 6\n'
    for n, w, g in ks:
        s += kd(n) + ".p2align 6\n"
    return s

def build_fused():
    g = G()
    prologue(g, 256, "k_end")
    g.e("s_cmp_ge_u32 s2, 128")
    g.e("s_cbranch_scc1 role_a")
    g.e(f"s_mov_b32 s{S_IDX}, s2")
    stamp(g, 0)
    roleB_ids(g)
    B1_loads(g, with_uv=False)
    stamp(g, 1)
    B1_compute(g)
    stamp(g, 2)
    B1_s2(g)
    stamp(g, 3)
    fill_wait(g)
    stamp(g, 4)
    B1_store(g)
    uv_loads(g)
    B2_loads_wo(g)
    g.vw0()
    stamp(g, 5)
    B2_prep(g)
    stamp(g, 7)
    B2_s4(g)
    stamp(g, 9)
    stamp_flush(g)
    g.e("s_endpgm")
    g.lab("role_a")
    g.vm = []
    g.e(f"s_sub_u32 s{S_IDX}, s2, 128")
    stamp(g, 0)
    roleA_ids(g)
    svc_fill(g)
    g.e("s_barrier")
    A_dma(g)
    F_gate_loads(g)
    stamp(g, 1)
    F_gate(g)
    stamp(g, 2)
    fill_wait(g)
    stamp(g, 3)
    A_qc(g)
    stamp(g, 5)
    A_qk(g)
    stamp(g, 6)
    A_softmax(g)
    stamp(g, 7)
    A_pv(g)
    stamp(g, 8)
    g.e(f"s_cmp_lt_u32 s{S_IDX}, 32")
    g.e("s_cbranch_scc1 role_f")
    g.e(f"s_cmp_lt_u32 s{S_IDX}, 64")
    g.e("s_cbranch_scc1 k_end2")
    g.e(f"s_cmp_ge_u32 s{S_IDX}, {64+NFFN}")
    g.e("s_cbranch_scc1 k_end2")
    g.e(f"s_sub_u32 s{S_IDX}, s{S_IDX}, 64")
    g.e("s_barrier")
    g.vm = []
    B2_loads_ffn(g)
    g.vw0()
    stamp(g, 9)
    B2_ffn(g)
    stamp(g, 10)
    g.e("s_branch k_end2")
    g.lab("role_f")
    g.e("s_barrier")
    F_final(g)
    stamp(g, 9)
    g.lab("k_end2")
    stamp_flush(g)
    g.lab("k_end")
    g.e("s_endpgm")
    launches = [f"; @launch grid=(256,1,1) block=(256,1,1) lds={LDS_BYTES}"]
    s = header(launches)
    s += kernel_open(KNAME) + "\n".join(g.L) + "\n"
    s += '.section .rodata,"a"\n.p2align 6\n' + kd(KNAME)
    return s

if __name__ == "__main__":
    mode = sys.argv[1]
    out = sys.argv[2]
    STAMPS = len(sys.argv) > 3
    s = build_multi() if mode == "multi" else build_fused()
    open(out, "w").write(s)
```

```python
import sys

KNAME = "gated_mix__compressed_kv_cla__geglu_ffn__decode_kernel"

QC_OFF   = 0
STAT_OFF = 0x10000
CP_OFF   = 0x18000
QP_OFF   = 0x540000
OUTP_OFF = 0x40000
PART_OFF = 0x140000
LDS_BYTES = 163840
MAXIT = 200000

class G:
    N = [0]
    def __init__(self):
        self.L = []
        self.vm = []
    def e(self, s):
        self.L.append("  " + s)
    def c(self, s):
        self.L.append("  ; " + s)
    def lab(self, s):
        self.L.append(s + ":")
    def nl(self, p="L"):
        G.N[0] += 1
        return f"{p}_{G.N[0]}"
    def vi(self, tag):
        self.vm.append(tag)
        assert len(self.vm) <= 63, "too many outstanding vmem"
    def vw(self, tag):
        if tag not in self.vm: return
        idx = max(i for i, t in enumerate(self.vm) if t == tag)
        n = len(self.vm) - 1 - idx
        self.e(f"s_waitcnt vmcnt({n})")
        self.vm = self.vm[idx + 1:]
    def vw0(self):
        self.e("s_waitcnt vmcnt(0)")
        self.vm = []
    def nop(self, n):
        self.e(f"s_nop {n-1}")

TS_OFF = 0x600000
STAMPS = False
def stamp(g, i):
    if STAMPS:
        g.e(f"s_memrealtime s[{64+2*i}:{65+2*i}]")
def stamp_flush(g, n=16):
    if not STAMPS: return
    lab = g.nl("Lts")
    g.e(f"s_cmp_lg_u32 s{S_WAVE}, 0")
    g.e(f"s_cbranch_scc1 {lab}")
    g.e("s_waitcnt lgkmcnt(0)")
    g.e("s_lshl_b32 s40, s2, 6")
    g.e(f"s_add_u32 s40, s40, {TS_OFF}")
    g.e("v_mov_b32 v5, s40")
    g.e("v_cmp_eq_u32 vcc, 0, v0")
    g.e("s_and_saveexec_b64 s[48:49], vcc")
    for i in range(n):
        g.e(f"v_mov_b32 v4, s{64+2*i}")
        g.e(f"global_store_dword v5, v4, s[30:31] offset:{4*i}")
    g.e("s_mov_b64 exec, s[48:49]")
    g.lab(lab)

def vr(a, n):
    return f"v[{a}:{a+n-1}]" if n > 1 else f"v{a}"

S_X, S_CKV, S_WQ, S_WUK, S_WUV, S_WO, S_BX, S_WG, S_WU, S_WD, S_GW, S_OUT, S_DBG, S_WS = [4 + 2*i for i in range(14)]
def sp(a): return f"s[{a}:{a+1}]"
S_WAVE = 33
S_H = 34
S_J = 35
S_SELLO = 36
S_SELHI = 37
S_CNT = 38
S_T0 = 40
S_EX = 48
S_B = 50
S_S = 51
S_IDX = 52

def prologue(g, nwg, endlab):
    g.e(f"s_cmp_ge_u32 s2, {nwg}")
    g.e(f"s_cbranch_scc1 {endlab}")
    g.e("s_load_dwordx16 s[4:19], s[0:1], 0")
    g.e("s_load_dwordx8 s[20:27], s[0:1], 64")
    g.e("s_load_dwordx4 s[28:31], s[0:1], 96")
    g.e("v_and_b32 v1, 63, v0")
    g.e("v_lshrrev_b32 v2, 6, v0")
    g.e("s_nop 0")
    g.e(f"v_readfirstlane_b32 s{S_WAVE}, v2")
    g.e(f"s_mov_b32 s{S_SELLO}, 0x05040100")
    g.e(f"s_mov_b32 s{S_SELHI}, 0x07060302")
    g.e("s_waitcnt lgkmcnt(0)")

def fill(g):
    g.c("sentinel fill (service wave)")
    for i in range(4):
        g.e(f"v_mov_b32 v{4+i}, -1")
    g.e("v_lshlrev_b32 v8, 4, v1")
    g.e(f"s_lshl_b32 s{S_T0}, s{S_IDX}, 13")
    g.e(f"s_add_u32 s{S_T0}, s{S_T0}, {OUTP_OFF}")
    g.e(f"v_add_u32 v9, s{S_T0}, v8")
    for i in range(8):
        g.e(f"global_store_dwordx4 v9, v[4:7], {sp(S_WS)} offset:{(i%4)*1024} sc1")
        if i == 3: g.e("v_add_u32 v9, 0x1000, v9")
    g.e(f"s_mul_i32 s{S_T0}, s{S_IDX}, 1792")
    g.e(f"v_add_u32 v9, s{S_T0}, v8")
    g.e(f"global_store_dwordx4 v9, v[4:7], {sp(S_WS)} sc1")
    g.e("v_cmp_gt_u32 vcc, 48, v1")
    g.e(f"s_and_saveexec_b64 {sp(S_EX)}, vcc")
    g.e(f"global_store_dwordx4 v9, v[4:7], {sp(S_WS)} offset:1024 sc1")
    g.e(f"s_mov_b64 exec, {sp(S_EX)}")
    g.e("s_waitcnt vmcnt(0)")
    g.e("v_cmp_eq_u32 vcc, 0, v1")
    g.e(f"s_and_saveexec_b64 {sp(S_EX)}, vcc")
    g.e(f"s_and_b32 s{S_T0}, s{S_IDX}, 7")
    g.e(f"s_lshl_b32 s{S_T0}, s{S_T0}, 2")
    g.e(f"v_mov_b32 v4, s{S_T0}")
    g.e("v_mov_b32 v5, 1")
    g.e(f"global_atomic_add v4, v5, {sp(S_DBG)} sc1")
    g.e(f"s_mov_b64 exec, {sp(S_EX)}")

def fill_wait(g, vt=4):
    g.c("fill wait")
    L = g.nl("Lfw"); D = g.nl("Lfwd")
    g.e(f"s_cmp_lg_u32 s{S_WAVE}, 0")
    g.e(f"s_cbranch_scc1 {D}")
    g.e(f"s_mov_b32 s{S_CNT}, {MAXIT}")
    g.e(f"v_and_b32 v{vt}, 7, v1")
    g.e(f"v_lshlrev_b32 v{vt}, 2, v{vt}")
    g.lab(L)
    g.e(f"global_load_dword v{vt+1}, v{vt}, {sp(S_DBG)} sc1")
    g.e("s_waitcnt vmcnt(0)")
    g.e(f"v_cmp_ne_u32 vcc, 16, v{vt+1}")
    g.e(f"s_cbranch_vccz {D}")
    g.e(f"s_sub_u32 s{S_CNT}, s{S_CNT}, 1")
    g.e(f"s_cmp_eq_u32 s{S_CNT}, 0")
    g.e(f"s_cbranch_scc1 {D}")
    g.e("s_sleep 8")
    g.e(f"s_branch {L}")
    g.lab(D)
    g.e("s_barrier")

def fill_poll(g, vt=4):
    L = g.nl("Lfp"); D = g.nl("Lfpd")
    g.e(f"s_mov_b32 s{S_CNT}, {MAXIT}")
    g.e(f"v_and_b32 v{vt}, 7, v1")
    g.e(f"v_lshlrev_b32 v{vt}, 2, v{vt}")
    g.lab(L)
    g.e(f"global_load_dword v{vt+1}, v{vt}, {sp(S_DBG)} sc1")
    g.e("s_waitcnt vmcnt(0)")
    g.e(f"v_cmp_ne_u32 vcc, 16, v{vt+1}")
    g.e(f"s_cbranch_vccz {D}")
    g.e(f"s_sub_u32 s{S_CNT}, s{S_CNT}, 1")
    g.e(f"s_cmp_eq_u32 s{S_CNT}, 0")
    g.e(f"s_cbranch_scc1 {D}")
    g.e("s_sleep 8")
    g.e(f"s_branch {L}")
    g.lab(D)

def poll(g, issue, regs, vt):
    L = g.nl("Lp"); D = g.nl("Lpd")
    g.e(f"s_mov_b32 s{S_CNT}, {MAXIT}")
    g.lab(L)
    issue()
    g.vw0()
    rs = list(regs)
    g.e(f"v_max_u32 v{vt}, v{rs[0]}, v{rs[1]}")
    rs = rs[2:]
    while len(rs) >= 2:
        g.e(f"v_max3_u32 v{vt}, v{vt}, v{rs[0]}, v{rs[1]}"); rs = rs[2:]
    if rs:
        g.e(f"v_max_u32 v{vt}, v{vt}, v{rs[0]}")
    g.e(f"v_cmp_eq_u32 vcc, -1, v{vt}")
    g.e(f"s_cbranch_vccz {D}")
    g.e(f"s_sub_u32 s{S_CNT}, s{S_CNT}, 1")
    g.e(f"s_cmp_eq_u32 s{S_CNT}, 0")
    g.e(f"s_cbranch_scc1 {D}")
    g.e("s_sleep 1")
    g.e(f"s_branch {L}")
    g.lab(D)

def light_poll(g, vaddr, vt, sleep=6):
    L = g.nl("Llp"); D = g.nl("Llpd")
    g.e(f"s_mov_b32 s{S_CNT}, {MAXIT}")
    g.lab(L)
    g.e(f"global_load_dword v{vt}, v{vaddr}, {sp(S_WS)} sc1")
    g.vw0()
    g.e(f"v_cmp_eq_u32 vcc, -1, v{vt}")
    g.e(f"s_cbranch_vccz {D}")
    g.e(f"s_sub_u32 s{S_CNT}, s{S_CNT}, 1")
    g.e(f"s_cmp_eq_u32 s{S_CNT}, 0")
    g.e(f"s_cbranch_scc1 {D}")
    g.e(f"s_sleep {sleep}")
    g.e(f"s_branch {L}")
    g.lab(D)

def canon(g, r):
    g.e(f"v_min_u32 v{r}, -2, v{r}")

def dot_pairs(g, A, B, xp0, xp1, acc, t0=4, t1=5):
    for i in range(4):
        g.e(f"v_perm_b32 v{t0}, v{B+i}, v{A+i}, s{S_SELLO}")
        g.e(f"v_perm_b32 v{t1}, v{B+i}, v{A+i}, s{S_SELHI}")
        g.e(f"v_dot2c_f32_bf16 v{acc+2*i}, v{t0}, v{xp0}")
        g.e(f"v_dot2c_f32_bf16 v{acc+2*i+1}, v{t1}, v{xp0}")
        g.e(f"v_dot2c_f32_bf16 v{acc+8+2*i}, v{t0}, v{xp1}")
        g.e(f"v_dot2c_f32_bf16 v{acc+8+2*i+1}, v{t1}, v{xp1}")

def prepair(g, A, B, t0=4):
    for i in range(4):
        g.e(f"v_perm_b32 v{t0}, v{B+i}, v{A+i}, s{S_SELLO}")
        g.e(f"v_perm_b32 v{B+i}, v{B+i}, v{A+i}, s{S_SELHI}")
        g.e(f"v_mov_b32 v{A+i}, v{t0}")

def dot_prepaired(g, A, B, xp0, xp1, acc):
    for i in range(4):
        g.e(f"v_dot2c_f32_bf16 v{acc+2*i}, v{A+i}, v{xp0}")
        g.e(f"v_dot2c_f32_bf16 v{acc+2*i+1}, v{B+i}, v{xp0}")
        g.e(f"v_dot2c_f32_bf16 v{acc+8+2*i}, v{A+i}, v{xp1}")
        g.e(f"v_dot2c_f32_bf16 v{acc+8+2*i+1}, v{B+i}, v{xp1}")

def zero(g, base, n):
    for i in range(n):
        g.e(f"v_mov_b32 v{base+i}, 0")

B_RED = 0
B_QBF = 0x8000
B_CTXC = 0x8200
B_CTXP = 0x8400
B_HBF = 0x8600
V_ACC = 16
V_XP = 32
V_WQ = 64
V_UK = 192
V_UV = 224

def roleB_ids(g):
    g.e(f"s_and_b32 s{S_H}, s{S_IDX}, 31")
    g.e(f"s_lshr_b32 s{S_J}, s{S_IDX}, 5")
    g.e("v_lshrrev_b32 v2, 4, v1")
    g.e("v_and_b32 v3, 15, v1")

S_Q = 56
def quarters(g):
    for k in range(4):
        g.e(f"s_add_u32 s{S_Q+k}, s{S_J}, {k}")
        g.e(f"s_and_b32 s{S_Q+k}, s{S_Q+k}, 3")

def B1_loads(g, with_uv=True):
    g.c("B1 loads: x pairs, w_q (own quarter first), w_uk")
    quarters(g)
    g.e(f"s_lshl_b32 s{S_T0}, s{S_WAVE}, 6")
    g.e("v_lshlrev_b32 v12, 4, v2")
    g.e(f"v_add_u32 v12, s{S_T0}, v12")
    g.e(f"s_lshl_b32 s{S_T0}, s{S_WAVE}, 18")
    g.e(f"s_lshl_b32 s{S_T0+1}, s{S_H}, 8")
    g.e(f"s_add_u32 s{S_T0}, s{S_T0}, s{S_T0+1}")
    g.e("v_lshlrev_b32 v13, 16, v2")
    g.e("v_lshlrev_b32 v11, 4, v3")
    g.e("v_add_u32 v13, v13, v11")
    g.e(f"v_add_u32 v13, s{S_T0}, v13")
    def xl(k):
        g.e(f"s_lshl_b32 s{S_T0+2}, s{S_Q+k}, 8")
        g.e(f"v_add_u32 v10, s{S_T0+2}, v12")
        for b in range(2):
            g.e(f"global_load_dwordx4 {vr(V_XP+8*k+4*b,4)}, v10, {sp(S_X)} offset:{b*1024}"); g.vi("x")
    def wl(k):
        g.e(f"s_lshl_b32 s{S_T0+2}, s{S_Q+k}, 20")
        g.e(f"v_add_u32 v10, s{S_T0+2}, v13")
        for i in range(8):
            g.e(f"global_load_dwordx4 {vr(V_WQ+32*k+4*i,4)}, v10, {sp(S_WQ)}"); g.vi(f"wq{k}")
            if i < 7: g.e("v_add_u32 v10, 0x2000, v10")
    for k in range(4): xl(k)
    wl(0)
    g.e(f"s_lshl_b32 s{S_T0}, s{S_J}, 20")
    g.e(f"s_lshl_b32 s{S_T0+2}, s{S_WAVE}, 18")
    g.e(f"s_add_u32 s{S_T0}, s{S_T0}, s{S_T0+2}")
    g.e(f"s_add_u32 s{S_T0}, s{S_T0}, s{S_T0+1}")
    g.e("v_lshlrev_b32 v10, 13, v3")
    g.e("v_lshlrev_b32 v11, 4, v2")
    g.e("v_add_u32 v10, v10, v11")
    g.e(f"v_add_u32 v10, s{S_T0}, v10")
    for tl in range(2):
        for ks in range(4):
            g.e(f"global_load_dwordx4 {vr(V_UK+16*tl+4*ks,4)}, v10, {sp(S_WUK)} offset:{ks*64}"); g.vi("uk")
        if tl == 0: g.e("v_add_u32 v10, 0x20000, v10")
    g.vw("wq0")
    for k in range(1, 4): wl(k)

def uv_loads(g):
    g.e(f"s_lshl_b32 s{S_T0}, s{S_J}, 20")
    g.e(f"s_lshl_b32 s{S_T0+2}, s{S_WAVE}, 18")
    g.e(f"s_add_u32 s{S_T0}, s{S_T0}, s{S_T0+2}")
    g.e(f"s_lshl_b32 s{S_T0+1}, s{S_H}, 8")
    g.e(f"s_add_u32 s{S_T0}, s{S_T0}, s{S_T0+1}")
    g.e("v_lshlrev_b32 v10, 16, v2")
    g.e("v_lshlrev_b32 v11, 4, v3")
    g.e("v_add_u32 v10, v10, v11")
    g.e(f"v_add_u32 v10, s{S_T0}, v10")
    for i in range(8):
        g.e(f"global_load_dwordx4 {vr(V_UV+4*i,4)}, v10, {sp(S_WUV)}"); g.vi("uv")
        if i < 7: g.e("v_add_u32 v10, 0x2000, v10")

def red16_to_bf16(g, dst):
    g.e("s_waitcnt lgkmcnt(0)")
    g.e("s_barrier")
    g.e("v_lshlrev_b32 v10, 2, v0")
    for p in range(16):
        g.e(f"ds_read_b32 v{64+p}, v10 offset:{B_RED+p*1024}") if False else None
    return

def red_write16(g):
    g.e(f"s_lshl_b32 s{S_T0}, s{S_WAVE}, 12")
    g.e("v_lshlrev_b32 v10, 10, v2")
    g.e("v_lshlrev_b32 v11, 5, v3")
    g.e("v_add_u32 v10, v10, v11")
    g.e(f"v_add_u32 v10, s{S_T0}, v10")
    g.nop(1)
    for b in range(2):
        for q in range(2):
            g.e(f"ds_write_b128 v10, {vr(V_ACC+8*b+4*q,4)} offset:{B_RED+b*512+q*16}")

def red_sum(g, npart, stride, dst, tmp):
    g.e("s_waitcnt lgkmcnt(0)")
    g.e("s_barrier")
    g.e("v_lshlrev_b32 v10, 2, v0")
    for p in range(npart):
        g.e(f"ds_read_b32 v{tmp+p}, v10 offset:{B_RED+p*stride}")
    g.e("s_waitcnt lgkmcnt(0)")
    n = npart
    while n > 1:
        for p in range(n // 2):
            g.e(f"v_add_f32 v{tmp+p}, v{tmp+p}, v{tmp+p+n//2}")
        n //= 2
    g.e(f"v_cvt_pk_bf16_f32 v{tmp}, v{tmp}, v{tmp}")
    g.e("v_lshlrev_b32 v10, 1, v0")
    g.e(f"ds_write_b16 v10, v{tmp} offset:{dst}")
    g.e("s_waitcnt lgkmcnt(0)")
    g.e("s_barrier")

def B1_compute(g):
    g.c("S1: q = x @ wq[:,h,:]")
    zero(g, V_ACC, 16)
    for k in range(4):
        g.vw(f"wq{k}")
        for t in range(4):
            dot_pairs(g, V_WQ+32*k+8*t, V_WQ+32*k+8*t+4, V_XP+8*k+t, V_XP+8*k+4+t, V_ACC)
    g.nop(3)
    red_write16(g)
    red_sum(g, 16, 1024, B_QBF, V_XP)

def B1_s2(g):
    g.c("S2: qc = q @ wuk^T")
    g.e("v_and_b32 v10, 1, v1")
    g.e("v_lshlrev_b32 v10, 8, v10")
    g.e("v_lshlrev_b32 v11, 4, v2")
    g.e("v_add_u32 v10, v10, v11")
    for ks in range(4):
        g.e(f"ds_read_b128 {vr(V_XP+4*ks,4)}, v10 offset:{B_QBF+ks*64}")
    zero(g, V_ACC, 8)
    g.vw("uk")
    g.e("s_waitcnt lgkmcnt(0)")
    for ks in range(4):
        for tl in range(2):
            g.e(f"v_mfma_f32_16x16x32_bf16 {vr(V_ACC+4*tl,4)}, {vr(V_UK+16*tl+4*ks,4)}, {vr(V_XP+4*ks,4)}, {vr(V_ACC+4*tl,4)}")

def B1_store(g):
    g.e(f"s_lshl_b32 s{S_T0}, s{S_H}, 10")
    g.e(f"s_lshl_b32 s{S_T0+1}, s{S_J}, 8")
    g.e(f"s_add_u32 s{S_T0}, s{S_T0}, s{S_T0+1}")
    g.e(f"s_lshl_b32 s{S_T0+1}, s{S_WAVE}, 6")
    g.e(f"s_add_u32 s{S_T0}, s{S_T0}, s{S_T0+1}")
    g.e("v_lshlrev_b32 v10, 15, v3")
    g.e("v_lshlrev_b32 v11, 3, v2")
    g.e("v_add_u32 v10, v10, v11")
    g.e(f"v_add_u32 v10, s{S_T0}, v10")
    g.nop(8)
    for tl in range(2):
        g.e(f"v_cvt_pk_bf16_f32 v{4+2*tl}, v{V_ACC+4*tl}, v{V_ACC+4*tl+1}")
        g.e(f"v_cvt_pk_bf16_f32 v{5+2*tl}, v{V_ACC+4*tl+2}, v{V_ACC+4*tl+3}")
    for r in range(4, 8): canon(g, r)
    g.e("v_cmp_gt_u32 vcc, 2, v3")
    g.e(f"s_and_saveexec_b64 {sp(S_EX)}, vcc")
    for tl in range(2):
        g.e(f"global_store_dwordx2 v10, {vr(4+2*tl,2)}, {sp(S_WS)} offset:{QC_OFF+tl*32} sc1"); g.vi("st")
    g.e(f"s_mov_b64 exec, {sp(S_EX)}")

V_WO = 64
V_FG = 192
V_FU = 208
V_FD = 32
V_FX = 48
NFFN = 112

def B2_loads_wo(g, between=None):
    g.c("B2 loads: w_o")
    g.e(f"s_lshl_b32 s{S_T0}, s{S_H}, 17")
    g.e(f"s_lshl_b32 s{S_T0+1}, s{S_WAVE}, 13")
    g.e(f"s_add_u32 s{S_T0}, s{S_T0}, s{S_T0+1}")
    g.e("v_lshlrev_b32 v13, 4, v1")
    g.e(f"v_add_u32 v13, s{S_T0}, v13")
    for k in range(4):
        if k == 1:
            if between: between()
            g.vw("wo0")
        g.e(f"s_lshl_b32 s{S_T0+2}, s{S_Q+k}, 15")
        g.e(f"v_add_u32 v10, s{S_T0+2}, v13")
        for i in range(8):
            g.e(f"global_load_dwordx4 {vr(V_WO+32*k+4*i,4)}, v10, {sp(S_WO)} offset:{(i%4)*1024}"); g.vi(f"wo{k}")
            if i == 3: g.e("v_add_u32 v10, 0x1000, v10")

def B2_loads_ffn(g):
    g.c("B2 loads: ffn weights")
    g.e("v_lshrrev_b32 v12, 1, v1")
    g.e("v_and_b32 v13, 1, v1")
    g.e(f"s_lshl_b32 s{S_T0}, s{S_WAVE}, 8")
    g.e("v_lshlrev_b32 v10, 3, v12")
    g.e(f"v_add_u32 v10, s{S_T0}, v10")
    for b in range(2):
        g.e(f"global_load_dwordx2 {vr(V_FX+2*b,2)}, v10, {sp(S_X)} offset:{b*1024}"); g.vi("ffn")
    g.e(f"s_mul_i32 s{S_T0}, s{S_WAVE}, {128*3584}")
    g.e(f"s_lshl_b32 s{S_T0+1}, s{S_IDX}, 5")
    g.e(f"s_add_u32 s{S_T0}, s{S_T0}, s{S_T0+1}")
    g.e(f"s_mov_b32 s{S_T0+1}, {4*3584}")
    g.e(f"v_mul_lo_u32 v10, v12, s{S_T0+1}")
    g.e("v_lshlrev_b32 v11, 4, v13")
    g.e("v_add_u32 v10, v10, v11")
    g.e(f"v_add_u32 v10, s{S_T0}, v10")
    for r in range(4):
        g.e(f"global_load_dwordx4 {vr(V_FG+4*r,4)}, v10, {sp(S_WG)}"); g.vi("ffn")
        g.e(f"global_load_dwordx4 {vr(V_FU+4*r,4)}, v10, {sp(S_WU)}"); g.vi("ffn")
        if r < 3: g.e("v_add_u32 v10, 3584, v10")
    g.e(f"s_lshl_b32 s{S_T0}, s{S_IDX}, 14")
    g.e(f"s_lshl_b32 s{S_T0+1}, s{S_WAVE}, 12")
    g.e(f"s_add_u32 s{S_T0}, s{S_T0}, s{S_T0+1}")
    g.e("v_lshlrev_b32 v10, 4, v1")
    g.e(f"v_add_u32 v10, s{S_T0}, v10")
    for r in range(4):
        g.e(f"global_load_dwordx4 {vr(V_FD+4*r,4)}, v10, {sp(S_WD)} offset:{r*1024}"); g.vi("ffn")

def red2_store(g, slot_sexpr_reg):
    g.e(f"s_lshl_b32 s{S_T0}, s{S_WAVE}, 12")
    g.e("v_lshlrev_b32 v10, 5, v1")
    g.e(f"v_add_u32 v10, s{S_T0}, v10")
    g.nop(2)
    for b in range(2):
        for q in range(2):
            g.e(f"ds_write_b128 v10, {vr(V_ACC+8*b+4*q,4)} offset:{B_RED+b*2048+q*16}")
    g.e("s_waitcnt lgkmcnt(0)")
    g.e("s_barrier")
    g.e("v_lshlrev_b32 v10, 4, v0")
    for w in range(4):
        g.e(f"ds_read_b128 {vr(V_ACC+4*w,4)}, v10 offset:{B_RED+w*4096}")
    g.e("s_waitcnt lgkmcnt(0)")
    for q in range(4):
        g.e(f"v_add_f32 v{V_ACC+q}, v{V_ACC+q}, v{V_ACC+4+q}")
        g.e(f"v_add_f32 v{V_ACC+8+q}, v{V_ACC+8+q}, v{V_ACC+12+q}")
    for q in range(4):
        g.e(f"v_add_f32 v{V_ACC+q}, v{V_ACC+q}, v{V_ACC+8+q}")
        canon(g, V_ACC+q)
    g.e(f"s_lshl_b32 s{S_T0}, s{slot_sexpr_reg}, 12")
    g.e(f"s_add_u32 s{S_T0}, s{S_T0}, {OUTP_OFF}")
    g.e(f"v_add_u32 v10, s{S_T0}, v10")
    g.e(f"global_store_dwordx4 v10, {vr(V_ACC,4)}, {sp(S_WS)} sc1"); g.vi("st")

def B2_ffn(g):
    g.c("FFN")
    g.e("v_lshrrev_b32 v12, 1, v1")
    g.e("v_and_b32 v13, 1, v1")
    zero(g, V_ACC, 16)
    for t in range(2):
        dot_pairs(g, V_FG+8*t, V_FG+8*t+4, V_FX+t, V_FX+2+t, V_ACC)
    zero(g, V_FG, 16)
    for t in range(2):
        dot_pairs(g, V_FU+8*t, V_FU+8*t+4, V_FX+t, V_FX+2+t, V_FG)
    g.nop(3)
    g.e(f"s_lshl_b32 s{S_T0}, s{S_WAVE}, 12")
    g.e("v_lshlrev_b32 v10, 7, v12")
    g.e("v_lshlrev_b32 v11, 5, v13")
    g.e("v_add_u32 v10, v10, v11")
    g.e(f"v_add_u32 v10, s{S_T0}, v10")
    for mat, base in ((0, V_ACC), (1, V_FG)):
        for b in range(2):
            for q in range(2):
                g.e(f"ds_write_b128 v10, {vr(base+8*b+4*q,4)} offset:{B_RED+mat*16384+b*64+q*16}")
    g.e("s_waitcnt lgkmcnt(0)")
    g.e("s_barrier")
    g.e("v_lshrrev_b32 v10, 7, v0")
    g.e("v_lshlrev_b32 v10, 14, v10")
    g.e("v_lshrrev_b32 v11, 5, v0")
    g.e("v_and_b32 v11, 3, v11")
    g.e("v_lshlrev_b32 v11, 12, v11")
    g.e("v_add_u32 v10, v10, v11")
    g.e("v_and_b32 v11, 31, v0")
    g.e("v_lshlrev_b32 v11, 2, v11")
    g.e("v_add_u32 v10, v10, v11")
    for p in range(16):
        g.e(f"ds_read_b32 v{V_ACC+p}, v10 offset:{B_RED+p*128}")
    for p in range(16):
        g.e(f"ds_read_b32 v{V_FG+p}, v10 offset:{B_RED+(16+p)*128}")
    g.e("s_waitcnt lgkmcnt(0)")
    for p in range(16):
        g.e(f"v_add_f32 v{V_ACC+p}, v{V_ACC+p}, v{V_FG+p}")
    for n in (8, 4, 2, 1):
        for p in range(n):
            g.e(f"v_add_f32 v{V_ACC+p}, v{V_ACC+p}, v{V_ACC+p+n}")
    g.e("v_lshlrev_b32 v10, 2, v0")
    g.e(f"ds_write_b32 v10, v{V_ACC} offset:{B_RED+32768+4096}")
    g.e("s_waitcnt lgkmcnt(0)")
    g.e("s_barrier")
    g.e("v_cmp_gt_u32 vcc, 32, v0")
    g.e(f"s_and_saveexec_b64 {sp(S_EX)}, vcc")
    sk2 = g.nl("Lffn32")
    g.e(f"s_cbranch_execz {sk2}")
    g.e("v_lshlrev_b32 v10, 2, v0")
    for p in range(8):
        g.e(f"ds_read_b32 v{V_ACC+p}, v10 offset:{B_RED+32768+4096+p*128}")
    g.e("s_waitcnt lgkmcnt(0)")
    g.e(f"v_add_f32 v4, v{V_ACC}, v{V_ACC+1}")
    g.e(f"v_add_f32 v4, v4, v{V_ACC+2}")
    g.e(f"v_add_f32 v4, v4, v{V_ACC+3}")
    g.e(f"v_add_f32 v5, v{V_ACC+4}, v{V_ACC+5}")
    g.e(f"v_add_f32 v5, v5, v{V_ACC+6}")
    g.e(f"v_add_f32 v5, v5, v{V_ACC+7}")
    g.e("v_mul_f32 v6, v4, v4")
    g.e(f"s_mov_b32 s{S_T0}, 0x3d122279")
    g.e(f"v_mov_b32 v7, 0x3f4c422a")
    g.e(f"v_fma_f32 v6, v6, s{S_T0}, v7")
    g.e("v_mul_f32 v6, v6, v4")
    g.e("v_mul_f32 v6, 0x4038aa3b, v6")
    g.e("v_exp_f32 v6, v6")
    g.nop(1)
    g.e("v_add_f32 v6, 1.0, v6")
    g.e("v_rcp_f32 v6, v6")
    g.nop(1)
    g.e("v_sub_f32 v6, 1.0, v6")
    g.e("v_mul_f32 v6, v6, v4")
    g.e("v_mul_f32 v6, v6, v5")
    g.e("v_cvt_pk_bf16_f32 v6, v6, v6")
    g.e("v_lshlrev_b32 v10, 1, v0")
    g.e(f"ds_write_b16 v10, v6 offset:{B_HBF}")
    g.lab(sk2)
    g.e(f"s_mov_b64 exec, {sp(S_EX)}")
    g.e("s_waitcnt lgkmcnt(0)")
    g.e("s_barrier")
    g.e(f"s_lshl_b32 s{S_T0}, s{S_WAVE}, 3")
    g.e(f"v_mov_b32 v10, s{S_T0}")
    for b in range(2):
        g.e(f"ds_read_b64 {vr(V_FX+2*b,2)}, v10 offset:{B_HBF+b*32}")
    zero(g, V_ACC, 16)
    g.e("s_waitcnt lgkmcnt(0)")
    for t in range(2):
        dot_pairs(g, V_FD+8*t, V_FD+8*t+4, V_FX+t, V_FX+2+t, V_ACC)
    g.nop(3)
    g.e(f"s_add_u32 s{S_T0+4}, s{S_IDX}, 128")
    red2_store(g, S_T0+4)
    g.e("s_barrier")

def B2_prep(g):
    g.c("pre-pair uv, wo in the shadow")
    for t in range(4):
        prepair(g, V_UV+8*t, V_UV+8*t+4)
    for t in range(16):
        prepair(g, V_WO+8*t, V_WO+8*t+4)

def wave_reduce(g, op, r, t):
    for ctl in ("quad_perm:[1,0,3,2]", "quad_perm:[2,3,0,1]", "row_half_mirror", "row_mirror"):
        g.nop(2)
        g.e(f"{op}_dpp v{r}, v{r}, v{r} {ctl} row_mask:0xf bank_mask:0xf")
    for sw in ("v_permlane16_swap_b32", "v_permlane32_swap_b32"):
        g.e(f"v_mov_b32 v{t}, v{r}")
        g.nop(2)
        g.e(f"{sw} v{r}, v{t}")
        g.nop(2)
        g.e(f"{op} v{r}, v{r}, v{t}")

V_PL = 192
def B2_s4(g):
    g.c("S4: combine partials")
    g.e(f"s_lshr_b32 s{S_B}, s{S_WAVE}, 1")
    g.e(f"s_and_b32 s{S_S}, s{S_WAVE}, 1")
    g.e(f"s_lshl_b32 s{S_T0}, s{S_B}, 5")
    g.e(f"s_add_u32 s{S_T0}, s{S_T0}, s{S_H}")
    g.e(f"s_lshl_b32 s{S_T0+1}, s{S_T0}, 9")
    g.e("v_lshlrev_b32 v12, 3, v1")
    g.e(f"v_add_u32 v12, s{S_T0+1}, v12")
    g.e(f"s_lshl_b32 s{S_T0+1}, s{S_T0}, 16")
    g.e(f"s_lshl_b32 s{S_T0+2}, s{S_S}, 15")
    g.e(f"s_add_u32 s{S_T0+1}, s{S_T0+1}, s{S_T0+2}")
    g.e(f"s_lshl_b32 s{S_T0+2}, s{S_J}, 8")
    g.e(f"s_add_u32 s{S_T0+1}, s{S_T0+1}, s{S_T0+2}")
    g.e(f"s_add_u32 s{S_T0+1}, s{S_T0+1}, {PART_OFF}")
    g.e("v_lshlrev_b32 v13, 10, v2")
    g.e("v_lshlrev_b32 v11, 4, v3")
    g.e("v_add_u32 v13, v13, v11")
    g.e(f"v_add_u32 v13, s{S_T0+1}, v13")
    g.e(f"v_add_u32 v12, {STAT_OFF}, v12")
    def issue():
        g.e(f"global_load_dwordx2 v[48:49], v12, {sp(S_WS)} sc1")
    poll(g, issue, [48, 49], 4)
    stamp(g, 8)
    for i in range(8):
        g.e(f"global_load_dwordx4 {vr(V_PL+4*i,4)}, v13, {sp(S_WS)} sc1"); g.vi("pl")
        if i < 7: g.e("v_add_u32 v13, 0x1000, v13")
    g.e("v_mov_b32 v50, v48")
    wave_reduce(g, "v_max_f32", 50, 51)
    g.e("v_sub_f32 v50, v48, v50")
    g.e("v_exp_f32 v50, v50")
    g.nop(1)
    g.e("v_mul_f32 v52, v50, v49")
    wave_reduce(g, "v_add_f32", 52, 51)
    g.e("v_rcp_f32 v52, v52")
    g.nop(1)
    g.e("v_mul_f32 v50, v50, v52")
    g.e(f"s_lshl_b32 s{S_T0}, s{S_S}, 7")
    g.e("v_lshlrev_b32 v10, 2, v2")
    g.e(f"v_add_u32 v10, s{S_T0}, v10")
    for i in range(8):
        g.e(f"ds_bpermute_b32 v{52+i}, v10, v50 offset:{16*i}")
    zero(g, V_ACC, 8)
    g.e("s_waitcnt lgkmcnt(0)")
    g.vw0()
    for i in range(8):
        for q in range(4):
            r = V_PL+4*i+q
            g.e(f"v_lshlrev_b32 v4, 16, v{r}")
            g.e(f"v_and_b32 v5, 0xffff0000, v{r}")
            g.e(f"v_fmac_f32 v{V_ACC+2*q}, v{52+i}, v4")
            g.e(f"v_fmac_f32 v{V_ACC+2*q+1}, v{52+i}, v5")
    g.e(f"s_lshl_b32 s{S_T0}, s{S_WAVE}, 11")
    g.e("v_lshlrev_b32 v10, 9, v2")
    g.e("v_lshlrev_b32 v11, 5, v3")
    g.e("v_add_u32 v10, v10, v11")
    g.e(f"v_add_u32 v10, s{S_T0}, v10")
    for q in range(2):
        g.e(f"ds_write_b128 v10, {vr(V_ACC+4*q,4)} offset:{B_RED+q*16}")
    g.e("s_waitcnt lgkmcnt(0)")
    g.e("s_barrier")
    g.e("v_lshrrev_b32 v10, 7, v0")
    g.e("v_lshlrev_b32 v10, 12, v10")
    g.e("v_and_b32 v11, 127, v0")
    g.e("v_lshlrev_b32 v11, 2, v11")
    g.e("v_add_u32 v10, v10, v11")
    for p in range(8):
        g.e(f"ds_read_b32 v{48+p}, v10 offset:{B_RED+p*512}")
    g.e("s_waitcnt lgkmcnt(0)")
    for n in (4, 2, 1):
        for p in range(n):
            g.e(f"v_add_f32 v{48+p}, v{48+p}, v{48+p+n}")
    g.e("v_cvt_pk_bf16_f32 v48, v48, v48")
    g.e("v_lshlrev_b32 v10, 1, v0")
    g.e(f"ds_write_b16 v10, v48 offset:{B_CTXC}")
    g.e("s_waitcnt lgkmcnt(0)")
    g.e("s_barrier")
    g.c("uv")
    g.e(f"s_lshl_b32 s{S_T0}, s{S_WAVE}, 6")
    g.e("v_lshlrev_b32 v10, 4, v2")
    g.e(f"v_add_u32 v10, s{S_T0}, v10")
    for b in range(2):
        g.e(f"ds_read_b128 {vr(48+4*b,4)}, v10 offset:{B_CTXC+b*256}")
    zero(g, V_ACC, 16)
    g.e("s_waitcnt lgkmcnt(0)")
    for t in range(4):
        dot_prepaired(g, V_UV+8*t, V_UV+8*t+4, 48+t, 52+t, V_ACC)
    g.nop(3)
    red_write16(g)
    red_sum(g, 16, 1024, B_CTXP, 192)
    g.c("o-proj")
    g.e(f"s_lshl_b32 s{S_T0}, s{S_WAVE}, 4")
    for k in range(4):
        g.e(f"s_lshl_b32 s{S_T0+1}, s{S_Q+k}, 6")
        g.e(f"s_add_u32 s{S_T0+1}, s{S_T0+1}, s{S_T0}")
        g.e(f"v_mov_b32 v10, s{S_T0+1}")
        for b in range(2):
            g.e(f"ds_read_b128 {vr(192+8*k+4*b,4)}, v10 offset:{B_CTXP+b*256}")
    zero(g, V_ACC, 16)
    g.e("s_waitcnt lgkmcnt(0)")
    for k in range(4):
        for t in range(4):
            dot_prepaired(g, V_WO+32*k+8*t, V_WO+32*k+8*t+4, 192+8*k+t, 192+8*k+4+t, V_ACC)
    g.nop(3)
    red2_store(g, S_IDX)

A_QC = 0
A_KV = 32768
A_PF = 0
A_MX = 8192
A_LS = 8192 + 512
A_OUT = 0

def swz(r):
    return ((r & 3) << 2) | ((r >> 2) & 3)

def roleA_ids(g):
    g.e(f"s_lshr_b32 s{S_B}, s{S_IDX}, 6")
    g.e(f"s_and_b32 s{S_S}, s{S_IDX}, 63")

import os
DMA_THR = int(os.environ.get('DMA_THR', '4'))
def A_dma(g):
    g.c("c_kv tile DMA")
    g.e(f"s_lshl_b32 s{S_T0}, s{S_B}, 23")
    g.e(f"s_lshl_b32 s{S_T0+1}, s{S_S}, 17")
    g.e(f"s_add_u32 s{S_T0}, s{S_T0}, s{S_T0+1}")
    g.e(f"s_lshl_b32 s{S_T0+1}, s{S_WAVE}, 15")
    g.e(f"s_add_u32 s{S_T0}, s{S_T0}, s{S_T0+1}")
    g.e(f"s_add_u32 s54, s{S_CKV}, s{S_T0}")
    g.e(f"s_addc_u32 s55, s{S_CKV+1}, 0")
    g.e("s_add_u32 s56, s54, 16384")
    g.e("s_addc_u32 s57, s55, 0")
    for i in range(16):
        g.e(f"v_xor_b32 v{16+i}, {swz(i)}, v1")
        g.e(f"v_lshlrev_b32 v{16+i}, 4, v{16+i}")
        if i & 12:
            g.e(f"v_add_u32 v{16+i}, {(i&12)*1024}, v{16+i}")
    g.e(f"s_lshl_b32 s{S_T0}, s{S_WAVE}, 15")
    for q in range(2):
        for i0 in range(0, 16, 4):
            g.e(f"s_add_u32 s{S_T0+1}, s{S_T0}, {A_KV+q*16384+i0*1024}")
            g.e(f"s_mov_b32 m0, s{S_T0+1}")
            g.e("s_nop 0")
            for i in range(i0, i0+4):
                g.e(f"global_load_lds_dwordx4 v{16+i}, s[{54+2*q}:{55+2*q}] offset:{(i&3)*1024}"); g.vi("dma")
            if DMA_THR: g.e(f"s_waitcnt vmcnt({DMA_THR})")

V_QL = 64
def A_qc(g):
    g.c("QC load + stage to LDS")
    g.e(f"s_lshl_b32 s{S_T0}, s{S_B}, 15")
    g.e("v_lshlrev_b32 v12, 4, v0")
    g.e(f"v_add_u32 v12, s{S_T0}, v12")
    g.e(f"s_lshl_b32 s{S_T0+1}, s{S_WAVE}, 10")
    g.e(f"s_add_u32 s{S_T0+1}, s{S_T0+1}, s{S_T0}")
    g.e("v_and_b32 v10, 31, v1")
    g.e("v_lshlrev_b32 v11, 8, v10")
    g.e("v_lshrrev_b32 v10, 2, v10")
    g.e("v_mul_u32_u24 v10, 3072, v10")
    g.e("v_add_u32 v10, v10, v11")
    g.e(f"v_add_u32 v10, s{S_T0+1}, v10")
    g.e("v_add_u32 v10, 252, v10")
    light_poll(g, 10, 4)
    def issue():
        g.e("v_mov_b32 v10, v12")
        for i in range(8):
            g.e(f"global_load_dwordx4 {vr(V_QL+4*i,4)}, v10, {sp(S_WS)} sc1")
            if i < 7: g.e("v_add_u32 v10, 0x1000, v10")
    poll(g, issue, list(range(V_QL, V_QL+32)), 4)
    stamp(g, 4)
    g.e(f"s_lshl_b32 s{S_T0}, s{S_WAVE}, 2")
    g.e(f"s_lshl_b32 s{S_T0+1}, s{S_WAVE}, 10")
    g.e(f"s_add_u32 s{S_T0+1}, s{S_T0+1}, {A_QC}")
    for i in range(4):
        g.e(f"v_xor_b32 v{4+i}, {i}, v1")
        g.e(f"v_xor_b32 v{4+i}, s{S_T0}, v{4+i}")
        g.e(f"v_lshlrev_b32 v{4+i}, 4, v{4+i}")
        g.e(f"v_add_u32 v{4+i}, s{S_T0+1}, v{4+i}")
    for i in range(8):
        g.e(f"ds_write_b128 v{4+(i&3)}, {vr(V_QL+4*i,4)} offset:{i*4096}")
    g.e("s_waitcnt lgkmcnt(0)")
    g.e("s_barrier")

V_SA = 16
V_SB = 24
V_S = 32
V_BUF = 96
def A_qk(g):
    g.c("QK^T")
    g.e("v_and_b32 v4, 31, v1")
    g.e("v_lshrrev_b32 v5, 5, v1")
    g.e("v_and_b32 v6, 3, v1")
    g.e("v_lshlrev_b32 v6, 2, v6")
    g.e("v_lshrrev_b32 v7, 2, v1")
    g.e("v_and_b32 v7, 3, v7")
    g.e("v_or_b32 v6, v6, v7")
    g.e("v_lshlrev_b32 v4, 10, v4")
    g.e(f"s_lshl_b32 s{S_T0}, s{S_WAVE}, 15")
    g.e(f"s_add_u32 s{S_T0}, s{S_T0}, {A_KV}")
    for ep in range(8):
        g.e(f"v_add_u32 v7, {2*ep}, v5")
        g.e("v_xor_b32 v7, v7, v6")
        g.e("v_lshlrev_b32 v7, 4, v7")
        g.e("v_add_u32 v7, v7, v4")
        g.e(f"v_add_u32 v{V_SA+ep}, s{S_T0}, v7")
        g.e(f"v_add_u32 v{V_SB+ep}, {A_QC}, v7")
    zero(g, V_S, 16)
    def rd(s):
        a, ep = s // 8, s % 8
        bb = V_BUF + 8*(s % 4)
        g.e(f"ds_read_b128 {vr(bb,4)}, v{V_SA+ep} offset:{a*256}")
        g.e(f"ds_read_b128 {vr(bb+4,4)}, v{V_SB+ep} offset:{a*256}")
    for s in range(4): rd(s)
    for s in range(32):
        out = min(3, 31 - s) * 2
        g.e(f"s_waitcnt lgkmcnt({out})")
        bb = V_BUF + 8*(s % 4)
        g.e(f"v_mfma_f32_32x32x16_bf16 {vr(V_S,16)}, {vr(bb,4)}, {vr(bb+4,4)}, {vr(V_S,16)}")
        if s + 4 < 32: rd(s + 4)
    g.e("s_barrier")
    g.nop(12)

V_PFR = 128
def A_softmax(g):
    g.c("softmax")
    g.e(f"v_max3_f32 v4, v{V_S}, v{V_S+1}, v{V_S+2}")
    for i in range(3, 15, 2):
        g.e(f"v_max3_f32 v4, v4, v{V_S+i}, v{V_S+i+1}")
    g.e(f"v_max_f32 v4, v4, v{V_S+15}")
    g.e("v_mov_b32 v5, v4")
    g.nop(2)
    g.e("v_permlane32_swap_b32 v4, v5")
    g.nop(2)
    g.e("v_max_f32 v4, v4, v5")
    g.e("v_and_b32 v6, 31, v1")
    g.e("v_lshlrev_b32 v6, 2, v6")
    g.e(f"v_add_u32 v6, {A_QC}, v6")
    g.e(f"s_lshl_b32 s{S_T0}, s{S_WAVE}, 7")
    g.e(f"v_add_u32 v7, s{S_T0}, v6")
    g.e(f"ds_write_b32 v7, v4 offset:{A_MX}")
    g.e("s_waitcnt lgkmcnt(0)")
    g.e("s_barrier")
    for w in range(4):
        g.e(f"ds_read_b32 v{8+w}, v6 offset:{A_MX+w*128}")
    g.e("s_waitcnt lgkmcnt(0)")
    g.e("v_max3_f32 v8, v8, v9, v10")
    g.e("v_max_f32 v8, v8, v11")
    g.e(f"s_mov_b32 s{S_T0+1}, 0x3e0293ee")
    g.e(f"v_mul_f32 v8, s{S_T0+1}, v8")
    for i in range(16):
        g.e(f"v_fma_f32 v{V_S+i}, v{V_S+i}, s{S_T0+1}, -v8")
    for i in range(16):
        g.e(f"v_exp_f32 v{V_S+i}, v{V_S+i}")
    g.nop(1)
    g.e(f"v_add_f32 v9, v{V_S}, v{V_S+1}")
    for i in range(2, 16):
        g.e(f"v_add_f32 v9, v9, v{V_S+i}")
    g.e("v_mov_b32 v10, v9")
    g.nop(2)
    g.e("v_permlane32_swap_b32 v9, v10")
    g.nop(2)
    g.e("v_add_f32 v9, v9, v10")
    g.e(f"ds_write_b32 v7, v9 offset:{A_LS}")
    for t in range(2):
        for q in range(4):
            g.e(f"v_cvt_pk_bf16_f32 v{12+q}, v{V_S+8*t+2*q}, v{V_S+8*t+2*q+1}") if t == 0 else g.e(f"v_cvt_pk_bf16_f32 v{V_S+q}, v{V_S+8*t+2*q}, v{V_S+8*t+2*q+1}")
    g.e(f"s_lshl_b32 s{S_T0}, s{S_WAVE}, 11")
    g.e("v_lshlrev_b32 v11, 4, v1")
    g.e(f"v_add_u32 v11, {A_QC}, v11")
    g.e(f"v_add_u32 v7, s{S_T0}, v11")
    g.e(f"ds_write_b128 v7, v[12:15] offset:{A_PF}")
    g.e(f"ds_write_b128 v7, {vr(V_S,4)} offset:{A_PF+1024}")
    g.e("s_waitcnt lgkmcnt(0)")
    g.e("s_barrier")
    for ks in range(8):
        g.e(f"ds_read_b128 {vr(V_PFR+4*ks,4)}, v11 offset:{A_PF+ks*1024}")
    for w in range(4):
        g.e(f"ds_read_b32 v{12+w}, v6 offset:{A_LS+w*128}")
    g.e("s_waitcnt lgkmcnt(0)")
    g.e("v_add_f32 v12, v12, v13")
    g.e("v_add_f32 v14, v14, v15")
    g.e("v_add_f32 v9, v12, v14")
    g.e("v_mov_b32 v2, v8")
    g.e("v_mov_b32 v3, v9")

V_PA = 16
V_O = 192
V_PB = 96
def A_pv(g):
    g.c("PV")
    g.e("v_lshrrev_b32 v4, 2, v1")
    g.e("v_and_b32 v4, 3, v4")
    g.e("v_lshrrev_b32 v5, 4, v1")
    g.e("v_and_b32 v5, 1, v5")
    g.e("v_lshlrev_b32 v5, 1, v5")
    g.e("v_lshrrev_b32 v6, 1, v1")
    g.e("v_and_b32 v6, 1, v6")
    g.e("v_or_b32 v5, v5, v6")
    g.e("v_lshrrev_b32 v6, 5, v1")
    g.e("v_and_b32 v7, 1, v1")
    g.e("v_lshlrev_b32 v7, 3, v7")
    g.e("v_lshlrev_b32 v8, 2, v6")
    g.e("v_add_u32 v8, v8, v4")
    g.e("v_lshlrev_b32 v8, 10, v8")
    g.e("v_add_u32 v8, v8, v7")
    g.e(f"s_lshl_b32 s{S_T0}, s{S_WAVE}, 8")
    g.e(f"s_add_u32 s{S_T0}, s{S_T0}, {A_KV}")
    g.e(f"v_add_u32 v8, s{S_T0}, v8")
    for ctl in range(4):
        for u in range(2):
            g.e(f"v_xor_b32 v9, {ctl}, v4")
            g.e("v_lshlrev_b32 v9, 2, v9")
            g.e(f"v_add_u32 v10, {2*u}, v6")
            g.e("v_xor_b32 v10, v10, v5")
            g.e("v_or_b32 v9, v9, v10")
            g.e("v_lshlrev_b32 v9, 4, v9")
            g.e("v_add_u32 v9, v9, v8")
            g.e(f"v_add_u32 v{V_PA+2*ctl+u}, {u*8192}, v9")
            g.e(f"v_add_u32 v{V_PA+8+2*ctl+u}, {u*8192+65536}, v9")
    zero(g, V_O, 64)
    steps = [(ks, ctl) for ks in range(8) for ctl in range(4)]
    def rd(n):
        ks, ctl = steps[n]
        bb = V_PB + 4*(n % 4)
        hi = 8 if ks >= 4 else 0
        for u in range(2):
            g.e(f"ds_read_b64_tr_b16 {vr(bb+2*u,2)}, v{V_PA+hi+2*ctl+u} offset:{(ks%4)*16384}")
    for n in range(4): rd(n)
    for n in range(32):
        ks, ctl = steps[n]
        out = min(3, 31 - n) * 2
        g.e(f"s_waitcnt lgkmcnt({out})")
        bb = V_PB + 4*(n % 4)
        g.e(f"v_mfma_f32_32x32x16_bf16 {vr(V_O+16*ctl,16)}, {vr(bb,4)}, {vr(V_PFR+4*ks,4)}, {vr(V_O+16*ctl,16)}")
        if n + 4 < 32: rd(n + 4)
    g.e("s_barrier")
    g.nop(12)
    g.c("transpose via LDS and store")
    g.e("v_and_b32 v4, 31, v1")
    g.e(f"v_mov_b32 v5, 1040")
    g.e("v_mul_lo_u32 v4, v4, v5")
    g.e("v_lshlrev_b32 v5, 3, v6")
    g.e("v_add_u32 v4, v4, v5")
    g.e(f"s_lshl_b32 s{S_T0}, s{S_WAVE}, 8")
    g.e(f"v_add_u32 v4, s{S_T0}, v4")
    for ctl in range(4):
        for gg in range(4):
            r = V_O + 16*ctl + 4*gg
            t = 8 + 2*(gg & 1)
            g.e(f"v_cvt_pk_bf16_f32 v{t}, v{r}, v{r+1}")
            g.e(f"v_cvt_pk_bf16_f32 v{t+1}, v{r+2}, v{r+3}")
            g.e(f"ds_write_b64 v4, {vr(t,2)} offset:{A_OUT+ctl*64+gg*16}")
    g.e("s_waitcnt lgkmcnt(0)")
    g.e("s_barrier")
    g.e(f"s_mul_i32 s{S_T0}, s{S_WAVE}, {8*1040}")
    g.e("v_lshlrev_b32 v4, 4, v1")
    g.e(f"v_add_u32 v5, s{S_T0}, v4")
    for r in range(8):
        g.e(f"ds_read_b128 {vr(64+4*r,4)}, v5 offset:{A_OUT+r*1040}")
    g.e(f"s_lshl_b32 s{S_T0}, s{S_B}, 21")
    g.e(f"s_lshl_b32 s{S_T0+1}, s{S_WAVE}, 19")
    g.e(f"s_add_u32 s{S_T0}, s{S_T0}, s{S_T0+1}")
    g.e(f"s_lshl_b32 s{S_T0+1}, s{S_S}, 10")
    g.e(f"s_add_u32 s{S_T0}, s{S_T0}, s{S_T0+1}")
    g.e(f"s_add_u32 s{S_T0}, s{S_T0}, {PART_OFF}")
    g.e(f"v_add_u32 v4, s{S_T0}, v4")
    for r in range(8):
        g.e(f"s_waitcnt lgkmcnt({7-r})")
        for q in range(4): canon(g, 64+4*r+q)
        g.e(f"global_store_dwordx4 v4, {vr(64+4*r,4)}, {sp(S_WS)} sc1"); g.vi("st")
        if r < 7: g.e("v_add_u32 v4, 0x10000, v4")
    g.vw0()
    g.e("s_barrier")
    sk = g.nl("Lst")
    g.e(f"s_cmp_lg_u32 s{S_WAVE}, 0")
    g.e(f"s_cbranch_scc1 {sk}")
    g.e(f"s_lshl_b32 s{S_T0}, s{S_B}, 14")
    g.e(f"s_lshl_b32 s{S_T0+1}, s{S_S}, 3")
    g.e(f"s_add_u32 s{S_T0}, s{S_T0}, s{S_T0+1}")
    g.e(f"s_add_u32 s{S_T0}, s{S_T0}, {STAT_OFF}")
    g.e("v_and_b32 v10, 31, v1")
    g.e("v_lshlrev_b32 v10, 9, v10")
    g.e(f"v_add_u32 v10, s{S_T0}, v10")
    g.e("v_cmp_gt_u32 vcc, 32, v1")
    g.e(f"s_and_saveexec_b64 {sp(S_EX)}, vcc")
    g.e(f"global_store_dwordx2 v10, v[2:3], {sp(S_WS)} sc1")
    g.e(f"s_mov_b64 exec, {sp(S_EX)}")
    g.lab(sk)

F_RED = 0
def F_gate_loads(g):
    g.e(f"s_lshr_b32 s{S_T0}, s{S_IDX}, 4")
    g.e(f"s_lshl_b32 s{S_T0}, s{S_T0}, 10")
    g.e("v_lshlrev_b32 v10, 4, v1")
    g.e(f"v_add_u32 v11, s{S_T0}, v10")
    g.e(f"global_load_dwordx4 v[240:243], v11, {sp(S_X)}"); g.vi("gx")
    g.e(f"global_load_dwordx4 v[244:247], v10, {sp(S_GW)}"); g.vi("gx")

def F_gate(g):
    g.vw("gx")
    g.e("v_mov_b32 v248, 0")
    for q in range(4):
        g.e(f"v_dot2c_f32_bf16 v248, v{240+q}, v{244+q}")
    g.nop(3)
    wave_reduce(g, "v_add_f32", 248, 249)
    g.e("v_mul_f32 v248, 0xbfb8aa3b, v248")
    g.e("v_exp_f32 v248, v248")
    g.nop(1)
    g.e("v_add_f32 v248, 1.0, v248")
    g.e("v_rcp_f32 v248, v248")
    g.nop(2)
    g.e("v_readfirstlane_b32 s60, v248")

def F_final(g):
    g.c("final reduce (idx<32)")
    g.e(f"s_lshl_b32 s{S_T0}, s{S_WAVE}, 15")
    g.e(f"s_lshl_b32 s{S_T0+1}, s{S_IDX}, 7")
    g.e(f"s_add_u32 s{S_T0}, s{S_T0}, s{S_T0+1}")
    g.e(f"s_add_u32 s{S_T0}, s{S_T0}, {OUTP_OFF}")
    g.e("v_lshrrev_b32 v12, 3, v1")
    g.e("v_lshlrev_b32 v12, 12, v12")
    g.e("v_and_b32 v13, 7, v1")
    g.e("v_lshlrev_b32 v13, 4, v13")
    g.e("v_add_u32 v12, v12, v13")
    g.e(f"v_add_u32 v12, s{S_T0}, v12")
    zero(g, 92, 4)
    g.e("v_lshrrev_b32 v10, 3, v1")
    g.e("v_lshlrev_b32 v10, 17, v10")
    g.e("v_and_b32 v11, 7, v1")
    g.e("v_lshlrev_b32 v11, 12, v11")
    g.e("v_add_u32 v10, v10, v11")
    g.e(f"v_add_u32 v10, s{S_T0}, v10")
    g.e(f"s_cmp_lt_u32 s{S_WAVE}, 2")
    g.e(f"s_cselect_b32 s{S_T0+1}, 64, 56")
    g.e(f"v_cmp_gt_u32 vcc, s{S_T0+1}, v1")
    g.e(f"s_and_saveexec_b64 {sp(S_EX)}, vcc")
    light_poll(g, 10, 4, sleep=2)
    g.e(f"s_mov_b64 exec, {sp(S_EX)}")
    def issue():
        g.e("v_mov_b32 v10, v12")
        for r in range(7):
            g.e(f"global_load_dwordx4 {vr(64+4*r,4)}, v10, {sp(S_WS)} sc1")
            g.e("v_add_u32 v10, 0x20000, v10")
        sk = g.nl("Lf7")
        g.e(f"s_cmp_ge_u32 s{S_WAVE}, 2")
        g.e(f"s_cbranch_scc1 {sk}")
        g.e(f"global_load_dwordx4 {vr(92,4)}, v10, {sp(S_WS)} sc1")
        g.lab(sk)
    poll(g, issue, list(range(64, 96)), 4)
    for q in range(4):
        g.e(f"v_add_f32 v{64+q}, v{64+q}, v{68+q}")
        g.e(f"v_add_f32 v{72+q}, v{72+q}, v{76+q}")
        g.e(f"v_add_f32 v{80+q}, v{80+q}, v{84+q}")
        g.e(f"v_add_f32 v{88+q}, v{88+q}, v{92+q}")
    for q in range(4):
        g.e(f"v_add_f32 v{64+q}, v{64+q}, v{72+q}")
        g.e(f"v_add_f32 v{68+q}, v{80+q}, v{88+q}")
    g.e(f"s_lshl_b32 s{S_T0}, s{S_WAVE}, 10")
    g.e("v_lshrrev_b32 v10, 3, v1")
    g.e("v_lshlrev_b32 v10, 7, v10")
    g.e("v_add_u32 v10, v10, v13")
    g.e(f"v_add_u32 v10, s{S_T0}, v10")
    g.e(f"ds_write_b128 v10, v[64:67] offset:{F_RED}")
    g.e(f"ds_write_b128 v10, v[68:71] offset:{F_RED+4096}")
    g.e("s_waitcnt lgkmcnt(0)")
    g.e("s_barrier")
    sk = g.nl("Lfin")
    g.e(f"s_cmp_lg_u32 s{S_WAVE}, 0")
    g.e(f"s_cbranch_scc1 {sk}")
    g.e("v_lshrrev_b32 v10, 5, v1")
    g.e("v_lshlrev_b32 v10, 12, v10")
    g.e("v_and_b32 v11, 31, v1")
    g.e("v_lshlrev_b32 v11, 2, v11")
    g.e("v_add_u32 v10, v10, v11")
    for p in range(32):
        g.e(f"ds_read_b32 v{64+p}, v10 offset:{F_RED+p*128}")
    g.e("s_waitcnt lgkmcnt(0)")
    for n in (16, 8, 4, 2, 1):
        for p in range(n):
            g.e(f"v_add_f32 v{64+p}, v{64+p}, v{64+p+n}")
    g.e("v_mov_b32 v248, s60")
    g.e("v_sub_f32 v5, 1.0, v248")
    g.e("v_cmp_gt_u32 vcc, 32, v1")
    g.nop(2)
    g.e("v_cndmask_b32 v5, v5, v248, vcc")
    g.e("v_mul_f32 v64, v64, v5")
    g.e("v_mov_b32 v65, v64")
    g.nop(2)
    g.e("v_permlane32_swap_b32 v64, v65")
    g.nop(2)
    g.e("v_add_f32 v64, v64, v65")
    g.nop(2)
    g.e("v_mov_b32_dpp v65, v64 quad_perm:[1,0,3,2] row_mask:0xf bank_mask:0xf")
    g.e("v_cvt_pk_bf16_f32 v64, v64, v65")
    g.e(f"s_lshl_b32 s{S_T0}, s{S_IDX}, 6")
    g.e("v_lshrrev_b32 v10, 1, v1")
    g.e("v_lshlrev_b32 v10, 2, v10")
    g.e(f"v_add_u32 v10, s{S_T0}, v10")
    g.e("v_and_b32 v11, 33, v1")
    g.e("v_cmp_eq_u32 vcc, 0, v11")
    g.e(f"s_and_saveexec_b64 {sp(S_EX)}, vcc")
    g.e(f"global_store_dword v10, v64, {sp(S_OUT)}")
    g.e(f"s_mov_b64 exec, {sp(S_EX)}")
    g.lab(sk)

def header(launches):
    s = open("cdna_kernels/" + KNAME[:-7] + ".s.ref").read().split("\n")
    hdr = [l for l in s if l.startswith(";") and "@launch" not in l]
    return "\n".join(hdr) + "\n" + "\n".join(launches) + "\n" + '.amdgcn_target "amdgcn-amd-amdhsa--gfx950"\n.text\n'

def kernel_open(name):
    return f".globl {name}\n.p2align 8\n.type {name},@function\n{name}:\n"

def kd(name, nv=256):
    return f""".amdhsa_kernel {name}
  .amdhsa_next_free_vgpr {nv}
  .amdhsa_next_free_sgpr 102
  .amdhsa_accum_offset {nv}
  .amdhsa_group_segment_fixed_size 0
  .amdhsa_kernarg_size 112
  .amdhsa_user_sgpr_count 2
  .amdhsa_user_sgpr_kernarg_segment_ptr 1
  .amdhsa_system_sgpr_workgroup_id_x 1
.end_amdhsa_kernel
"""

def tlb_warm(g, items):
    r = 80
    for base, off in items:
        if off < (1 << 20):
            g.e(f"s_load_dword s{r}, {sp(base)}, {off}")
        else:
            g.e(f"s_add_u32 s62, s{base}, {off}")
            g.e(f"s_addc_u32 s63, s{base+1}, 0")
            g.e(f"s_load_dword s{r}, s[62:63], 0")
        r += 1
        if r > 99: r = 80

def svc_fill(g):
    sk = g.nl("Lsvc")
    g.e(f"s_cmp_lg_u32 s{S_WAVE}, 3")
    g.e(f"s_cbranch_scc1 {sk}")
    fill(g)
    g.lab(sk)

def build_multi():
    ks = []
    g = G(); prologue(g, 128, "k0_end"); g.e(f"s_mov_b32 s{S_IDX}, s2"); svc_fill(g); g.lab("k0_end"); g.e("s_endpgm"); ks.append(("k0_fill_kernel", 128, g))
    g = G(); prologue(g, 128, "k1_end"); g.e(f"s_mov_b32 s{S_IDX}, s2"); roleB_ids(g); B1_loads(g, with_uv=False); B1_compute(g); B1_s2(g); B1_store(g)
    g.lab("k1_end"); g.e("s_endpgm"); ks.append(("k1_b1_kernel", 128, g))
    g = G(); prologue(g, 128, "k2_end"); g.e(f"s_mov_b32 s{S_IDX}, s2"); roleA_ids(g); A_dma(g); A_qc(g); A_qk(g); A_softmax(g); A_pv(g)
    g.lab("k2_end"); g.e("s_endpgm"); ks.append(("k2_attn_kernel", 128, g))
    g = G(); prologue(g, 128, "k3_end"); g.e(f"s_mov_b32 s{S_IDX}, s2"); roleB_ids(g); B2_loads_ffn(g); B2_loads_wo(g); g.vw0(); B2_ffn(g); B2_prep(g); B2_s4(g)
    g.lab("k3_end"); g.e("s_endpgm"); ks.append(("k3_b2_kernel", 128, g))
    g = G(); prologue(g, 32, "k4_end"); g.e(f"s_mov_b32 s{S_IDX}, s2"); F_gate_loads(g); F_gate(g); F_final(g)
    g.lab("k4_end"); g.e("s_endpgm"); ks.append((KNAME, 32, g))
    launches = [f"; @launch kernel={n} grid=({w},1,1) block=(256,1,1) lds={LDS_BYTES}" for n, w, _ in ks]
    s = header(launches)
    for n, w, g in ks:
        s += kernel_open(n) + "\n".join(g.L) + "\n"
    s += '.section .rodata,"a"\n.p2align 6\n'
    for n, w, g in ks:
        s += kd(n) + ".p2align 6\n"
    return s

def roleB(g, ffn):
    g.vm = []
    stamp(g, 0)
    roleB_ids(g)
    B1_loads(g, with_uv=False)
    stamp(g, 1)
    B1_compute(g)
    stamp(g, 2)
    B1_s2(g)
    stamp(g, 3)
    fill_wait(g)
    stamp(g, 4)
    B1_store(g)
    if ffn: B2_loads_ffn(g)
    uv_loads(g)
    B2_loads_wo(g)
    if ffn:
        B2_ffn(g)
    g.vw0()
    stamp(g, 5)
    B2_prep(g)
    stamp(g, 7)
    B2_s4(g)
    stamp(g, 9)
    stamp_flush(g)
    g.e("s_endpgm")

def build_fused():
    g = G()
    prologue(g, 256, "k_end")
    g.e("s_cmp_ge_u32 s2, 128")
    g.e("s_cbranch_scc1 role_a")
    g.e(f"s_mov_b32 s{S_IDX}, s2")
    g.e(f"s_cmp_ge_u32 s2, {NFFN}")
    g.e("s_cbranch_scc1 role_b2")
    roleB(g, True)
    g.lab("role_b2")
    roleB(g, False)
    g.lab("role_a")
    g.vm = []
    g.e(f"s_sub_u32 s{S_IDX}, s2, 128")
    stamp(g, 0)
    roleA_ids(g)
    svc_fill(g)
    g.e("s_barrier")
    A_dma(g)
    F_gate_loads(g)
    stamp(g, 1)
    F_gate(g)
    stamp(g, 2)
    fill_wait(g)
    stamp(g, 3)
    A_qc(g)
    stamp(g, 5)
    A_qk(g)
    stamp(g, 6)
    A_softmax(g)
    stamp(g, 7)
    A_pv(g)
    stamp(g, 8)
    g.e(f"s_cmp_ge_u32 s{S_IDX}, 32")
    g.e("s_cbranch_scc1 k_end2")
    g.e("s_barrier")
    F_final(g)
    stamp(g, 9)
    g.lab("k_end2")
    stamp_flush(g)
    g.lab("k_end")
    g.e("s_endpgm")
    launches = [f"; @launch grid=(256,1,1) block=(256,1,1) lds={LDS_BYTES}"]
    s = header(launches)
    s += kernel_open(KNAME) + "\n".join(g.L) + "\n"
    s += '.section .rodata,"a"\n.p2align 6\n' + kd(KNAME)
    return s

if __name__ == "__main__":
    mode = sys.argv[1]
    out = sys.argv[2]
    STAMPS = len(sys.argv) > 3
    s = build_multi() if mode == "multi" else build_fused()
    open(out, "w").write(s)
```
